```python
import torch

def _softmax(x, axis=-1):
    return torch.softmax(x, dim=axis)
def _gelu(x):
    return torch.nn.functional.gelu(x, approximate="tanh")
def _silu(x):
    return torch.nn.functional.silu(x)
def _sigmoid(x):
    return torch.sigmoid(x)
def _layernorm(x, axis=-1, eps=1e-5):
    m = x.mean(dim=axis, keepdim=True)
    v = x.var(dim=axis, keepdim=True, unbiased=False)
    return (x - m) / torch.sqrt(v + eps)
def _scatter_add(tgt, idx, src, axis=0):
    return tgt.clone().index_add_(axis, idx, src)
def _segment_sum(src, seg, n):
    out = torch.zeros((n,) + src.shape[1:], dtype=src.dtype)
    return out.index_add_(0, seg, src)
def _pad(x, pw):
    flat = tuple(v for pair in reversed(pw) for v in pair)
    return torch.nn.functional.pad(x, flat)

kernel_name = 'sequential_preLN__spectral_gfnet__dense_activation_gelu__prompt'

def setup_inputs():

    _w = (lambda a: (lambda t: t.to(torch.bfloat16) if t.is_floating_point() else t)(torch.as_tensor(a)))
    def _A_setup():
        B, S, D = 1, 2048, 576
        Df = D // 2 + 1
        return {
            "x": _w((lambda *s: torch.randn(*s, dtype=torch.bfloat16) * 0.05)(B, S, D)),
            "w_r": _w((lambda *s: torch.randn(*s, dtype=torch.bfloat16) * 0.8)(S, Df) * 0.02),
            "w_i": _w((lambda *s: torch.randn(*s, dtype=torch.bfloat16) * 0.8)(S, Df) * 0.02),
        }
    _A_in = _A_setup()

    def _B_setup():
        B, S, D, F = 1, 2048, 576, 4608
        return {
            "x": _w((lambda *s: torch.randn(*s, dtype=torch.bfloat16) * 0.05)(B, S, D)),
            "w1": _w((lambda *s: torch.randn(*s, dtype=torch.bfloat16) * 0.8)(D, F) * (D ** -0.5)),
            "b1": _w((lambda *s: torch.randn(*s, dtype=torch.bfloat16) * 12.8)(F) * 0.01),
            "w2": _w((lambda *s: torch.randn(*s, dtype=torch.bfloat16) * 0.2)(F, D) * (F ** -0.5)),
            "b2": _w((lambda *s: torch.randn(*s, dtype=torch.bfloat16) * 3.2)(D) * 0.01),
        }
    _B_in = _B_setup()

    return {
        "A_x": _A_in["x"],
        "A_w_r": _A_in["w_r"],
        "A_w_i": _A_in["w_i"],
        "B_x": _B_in["x"],
        "B_w1": _B_in["w1"],
        "B_b1": _B_in["b1"],
        "B_w2": _B_in["w2"],
        "B_b2": _B_in["b2"],
    }

def reference(A_x, A_w_r, A_w_i, B_x, B_w1, B_b1, B_w2, B_b2):
    def _A_ref(x, w_r, w_i):
        B, S, D = x.shape
        X = (lambda x, axes=(-2,-1): torch.fft.rfft2(x.float(), dim=axes))(x, axes=(-2, -1))
        W = w_r + 1j * w_i
        X = X * W
        y = (lambda x, s, axes=(-2,-1): torch.fft.irfft2(x, s=s, dim=axes).to(torch.bfloat16))(X, (S, D), axes=(-2, -1))
        return y

    def _B_ref(x, w1, b1, w2, b2):
        h = torch.einsum("bsd,df->bsf", x, w1) + b1
        h = _gelu(h)
        return torch.einsum("bsf,fd->bsd", h, w2) + b2

    x = A_x
    h = x + _A_ref(_layernorm(x, axis=-1), A_w_r, A_w_i)
    h2 = h + _B_ref(_layernorm(h, axis=-1), B_w1, B_b1, B_w2, B_b2)
    return h2
```

```python
class Asm:
    def __init__(self):
        self.lines = []
    def e(self, s):
        self.lines.append("  " + s)
    def raw(self, s):
        self.lines.append(s)
    def label(self, s):
        self.lines.append(s + ":")
    def c(self, s):
        self.lines.append("  ; " + s)
    def text(self):
        return "\n".join(self.lines) + "\n"

class VQ:
    def __init__(self, name, maxn):
        self.name = name; self.maxn = maxn
        self.n = 0
        self.done = 0
    def issue(self):
        self.n += 1
        return self.n
    def need(self, opid):
        if opid <= self.done: return None
        N = self.n - opid
        self.done = opid
        assert N <= self.maxn, (self.name, N)
        return N
    def drain(self):
        self.done = self.n

def waitcnt(vm=None, lgkm=None):
    parts = []
    if vm is not None: parts.append("vmcnt(%d)" % vm)
    if lgkm is not None: parts.append("lgkmcnt(%d)" % lgkm)
    if not parts: return None
    return "s_waitcnt " + " ".join(parts)

def vr(a, n=1):
    return "v%d" % a if n == 1 else "v[%d:%d]" % (a, a + n - 1)
def ar(a, n=1):
    return "a%d" % a if n == 1 else "a[%d:%d]" % (a, a + n - 1)
def sr(a, n=1):
    return "s%d" % a if n == 1 else "s[%d:%d]" % (a, a + n - 1)

def f2u(x):
    import struct
    return struct.unpack("<I", struct.pack("<f", x))[0]
def fhex(x):
    return "0x%08x" % f2u(x)

KD_FMT = """.p2align 6
.amdhsa_kernel {name}
  .amdhsa_next_free_vgpr {vgpr}
  .amdhsa_next_free_sgpr {sgpr}
  .amdhsa_accum_offset {accum}
  .amdhsa_group_segment_fixed_size 0
  .amdhsa_kernarg_size 88
  .amdhsa_user_sgpr_count 2
  .amdhsa_user_sgpr_kernarg_segment_ptr 1
  .amdhsa_system_sgpr_workgroup_id_x 1
  .amdhsa_float_denorm_mode_32 3
.end_amdhsa_kernel
"""
```

```python
from asmlib import *
from layout import *
import math

NT_WT = 72

def gen_k1(name="k1_kernel", prefetch=None):
    A=Asm(); e=A.e
    A.raw(".globl %s\n.p2align 8\n.type %s,@function\n%s:" % (name,name,name))
    e("s_cmp_ge_u32 s2, %d" % (256+NT_WT))
    e("s_cbranch_scc1 %s_end" % name)
    e("s_load_dwordx2 s[4:5], s[0:1], 80")
    e("s_load_dwordx2 s[6:7], s[0:1], 0")
    e("s_load_dwordx4 s[36:39], s[0:1], 8")
    if prefetch:
        for l in prefetch: e(l)
    e("v_and_b32 v1, 63, v0")
    e("v_lshrrev_b32 v2, 6, v0")
    e("s_nop 0")
    e("v_readfirstlane_b32 s18, v2")
    e("s_cmp_ge_u32 s2, 256")
    e("s_cbranch_scc1 %s_wt" % name)
    LDS_ST=36864
    V_L15=2; V_Q=3; V_BE=4; V_BO=5; V_DMA=6
    V_SG=7; V_DL=10; V_B0=13; V_T2=16; V_SO=19
    ACC=24
    BF=72
    AF=180
    e("s_and_b32 s16, s2, 7")
    e("s_lshr_b32 s17, s2, 3")
    e("s_and_b32 s19, s17, 3")
    e("s_lshr_b32 s17, s17, 2"); e("s_lshl_b32 s17, s17, 3"); e("s_add_u32 s17, s17, s16")
    e("v_and_b32 v%d, 15, v1" % V_L15)
    e("v_lshrrev_b32 v%d, 4, v1" % V_Q)
    e("v_lshrrev_b32 v22, 1, v%d" % V_L15)
    e("v_xor_b32 v22, v%d, v22" % V_Q)
    e("v_lshlrev_b32 v22, 4, v22")
    e("v_lshl_add_u32 v%d, v%d, 7, v22" % (V_BE, V_L15))
    e("v_xor_b32 v%d, 64, v%d" % (V_BO, V_BE))
    e("v_lshrrev_b32 v22, 3, v1")
    e("s_lshl_b32 s20, s18, 3")
    e("v_add_u32 v22, s20, v22")
    e("s_movk_i32 s21, 1152")
    e("v_mul_lo_u32 v22, v22, s21")
    e("s_lshl_b32 s20, s18, 2")
    e("v_add_u32 v23, s20, v%d" % V_Q)
    e("v_and_b32 v23, 7, v23")
    e("v_and_b32 v%d, 7, v1" % V_DMA)
    e("v_xor_b32 v%d, v%d, v23" % (V_DMA, V_DMA))
    e("v_lshl_add_u32 v%d, v%d, 4, v22" % (V_DMA, V_DMA))
    e("s_waitcnt lgkmcnt(0)")
    e("s_mov_b32 s8, s4"); e("s_mov_b32 s9, s5"); e("s_mov_b32 s10, 0x%x" % WS_BYTES); e("s_mov_b32 s11, 0x20000")
    e("s_mov_b32 s12, s6"); e("s_mov_b32 s13, s7"); e("s_mov_b32 s14, %d" % (S*D*2)); e("s_mov_b32 s15, 0x20000")
    e("s_mul_i32 s23, s17, %d" % (32*1152))
    e("s_lshl_b32 s24, s18, 10")
    for cb in range(9):
        e("s_add_u32 m0, s24, %d" % (cb*4096))
        if cb>0: e("s_add_u32 s23, s23, 128")
        else: e("s_nop 0")
        e("buffer_load_dwordx4 v%d, s[12:15], s23 offen lds" % V_DMA)
    e("s_cmp_eq_u32 s18, 3")
    e("s_cbranch_scc1 %s_stats" % name)
    e("s_mul_i32 s20, s19, 144"); e("s_mul_i32 s21, s18, 48"); e("s_add_u32 s20, s20, s21")
    for nb in range(3):
        c="v22"; k="v23"
        e("v_add_u32 v22, s20, v%d" % V_L15)
        if nb: e("v_add_u32 v22, %d, v22" % (16*nb))
        e("v_lshlrev_b32 v%d, 12, v22" % (V_SO+nb))
        e("v_lshrrev_b32 v23, 1, v22")
        e("v_and_b32 v22, 1, v22")
        e("v_and_b32 v%d, 1, v23" % (V_SG+nb))
        e("v_lshlrev_b32 v%d, 31, v%d" % (V_SG+nb, V_SG+nb))
        e("v_or_b32 v%d, 1.0, v%d" % (V_SG+nb, V_SG+nb))
        e("v_cmp_eq_u32 vcc, 0, v23")
        e("v_mov_b32 v%d, 0x120" % (V_DL+nb))
        e("v_cvt_f32_u32 v22, v22")
        e("v_cndmask_b32 v23, v23, v%d, vcc" % (V_DL+nb))
        e("v_cvt_f32_u32 v23, v23")
        e("v_mul_f32 v%d, %s, v23" % (V_DL+nb, fhex(1.0/576.0)))
        e("v_cvt_f32_u32 v23, v%d" % V_Q)
        e("v_mul_f32 v23, 8.0, v23") if False else e("v_mul_f32 v23, %s, v23" % fhex(8.0))
        e("v_mul_f32 v22, %s, v22" % fhex(0.25))
        e("v_fma_f32 v%d, v%d, v23, v22" % (V_B0+nb, V_DL+nb))
        e("v_mul_f32 v22, %s, v%d" % (fhex(32.0), V_DL+nb))
        e("v_fract_f32 v22, v22")
        e("v_cos_f32 v22, v22")
        e("s_nop 0")
        e("v_add_f32 v%d, v22, v22" % (V_T2+nb))
    e("s_lshl_b32 s21, s17, 6")
    e("v_lshlrev_b32 v22, 3, v%d" % V_Q)
    e("v_add_u32 v22, s21, v22")
    for nb in range(3): e("v_add_u32 v%d, v%d, v22" % (V_SO+nb, V_SO+nb))
    G=[ACC, ACC+24]
    def pack(ks, g):
        for nb in range(3):
            for j in range(4):
                e("v_cvt_pk_bf16_f32 v%d, v%d, v%d" % (BF+(ks*3+nb)*4+j, g+nb*8+2*j, g+nb*8+2*j+1))
    for ks in range(2):
        g=G[ks]
        for nb in range(3):
            for i in range(8):
                cst=32*ks+i
                if cst==0: e("v_cos_f32 v%d, v%d" % (g+nb*8+i, V_B0+nb))
                else:
                    e("v_fmamk_f32 v%d, v%d, %s, v%d" % (g+nb*8+i, V_DL+nb, fhex(float(cst)), V_B0+nb))
            for i in range(8):
                cst=32*ks+i
                if cst: e("v_cos_f32 v%d, v%d" % (g+nb*8+i, g+nb*8+i))
        e("s_nop 0")
        pack(ks,g)
    for ks in range(2,9):
        g=G[ks&1]; gp=G[(ks-1)&1]
        for nb in range(3):
            for i in range(8):
                e("v_fma_f32 v%d, v%d, v%d, -v%d" % (g+nb*8+i, V_T2+nb, gp+nb*8+i, g+nb*8+i))
        pack(ks,g)
    e("s_waitcnt vmcnt(0)")
    e("s_barrier")
    def rdA(ks, buf):
        for half in range(2):
            kk=ks+9*half
            for mb in range(2):
                v=V_BO if kk&1 else V_BE
                e("ds_read_b128 %s, v%d offset:%d" % (vr(AF+buf*16+(half*2+mb)*4,4), v, (kk>>1)*4096+mb*2048))
    rdA(0,0)
    for ks in range(9):
        if ks<8:
            rdA(ks+1,(ks+1)&1); e("s_waitcnt lgkmcnt(4)")
        else: e("s_waitcnt lgkmcnt(0)")
        for half in range(2):
            for mb in range(2):
                for nb in range(3):
                    d=vr(ACC+half*24+(mb*3+nb)*4,4)
                    e("v_mfma_f32_16x16x32_bf16 %s, %s, %s, %s" % (d, vr(AF+(ks&1)*16+(half*2+mb)*4,4), vr(BF+(ks*3+nb)*4,4), "0" if ks==0 else d))
    e("s_barrier")
    e("v_lshlrev_b32 v22, 4, v%d" % V_Q)
    e("v_add_u32 v22, %d, v22" % LDS_ST)
    e("ds_read_b128 v[180:183], v22")
    e("ds_read_b128 v[184:187], v22 offset:64")
    e("s_mov_b32 s25, 0x%x" % OFF_XP)
    e("s_nop 4")
    e("s_waitcnt lgkmcnt(0)")
    for mb in range(2):
        for nb in range(3):
            lo=ACC+(mb*3+nb)*4; hi=lo+24
            for r in range(4): e("v_fma_f32 v%d, v%d, v%d, v%d" % (lo+r, hi+r, V_SG+nb, lo+r))
            for r in range(4): e("v_mul_f32 v%d, v%d, v%d" % (lo+r, lo+r, 180+mb*4+r))
            e("v_cvt_pk_bf16_f32 v%d, v%d, v%d" % (hi, lo, lo+1))
            e("v_cvt_pk_bf16_f32 v%d, v%d, v%d" % (hi+1, lo+2, lo+3))
            e("buffer_store_dwordx2 %s, v%d, s[8:11], s25 offen offset:%d" % (vr(hi,2), V_SO+nb, mb*32))
    e("s_endpgm")
    A.label("%s_stats" % name)
    e("v_mov_b32 v72, 0x3f803f80"); e("v_mov_b32 v73, 0x3f803f80"); e("v_mov_b32 v74, 0x3f803f80"); e("v_mov_b32 v75, 0x3f803f80")
    e("s_waitcnt vmcnt(0)")
    e("s_barrier")
    groups=[(mb,p) for mb in range(2) for p in range(3)]
    def rd(gi):
        mb,p=groups[gi]
        for kk in range(6*p,6*p+6):
            v=V_BO if kk&1 else V_BE
            e("ds_read_b128 %s, v%d offset:%d" % (vr(80+(gi%3)*24+(kk-6*p)*4,4), v, (kk>>1)*4096+mb*2048))
    rd(0); rd(1)
    for gi in range(6):
        mb,p=groups[gi]
        e("s_waitcnt lgkmcnt(%d)" % (6 if gi<5 else 0))
        for kk in range(6):
            a=vr(80+(gi%3)*24+kk*4,4)
            first=(p==0 and kk==0)
            e("v_mfma_f32_16x16x32_bf16 %s, %s, %s, %s" % (vr(24+mb*8,4), a, a, "0" if first else vr(24+mb*8,4)))
            e("v_mfma_f32_16x16x32_bf16 %s, %s, %s, %s" % (vr(28+mb*8,4), a, vr(72,4), "0" if first else vr(28+mb*8,4)))
        if gi+2<6: rd(gi+2)
    e("s_nop 7"); e("s_nop 1")
    e("v_and_b32 v22, 3, v1")
    for mb in range(2):
        g=24+mb*8; sx=28+mb*8
        o=40+mb*4
        e("v_cmp_eq_u32 vcc, 1, v22"); e("s_nop 1")
        e("v_cndmask_b32 v%d, v%d, v%d, vcc" % (o, g, g+1)); e("v_cndmask_b32 v%d, v%d, v%d, vcc" % (o+1, sx, sx+1))
        e("v_cmp_eq_u32 vcc, 2, v22"); e("s_nop 1")
        e("v_cndmask_b32 v%d, v%d, v%d, vcc" % (o, o, g+2)); e("v_cndmask_b32 v%d, v%d, v%d, vcc" % (o+1, o+1, sx+2))
        e("v_cmp_eq_u32 vcc, 3, v22"); e("s_nop 1")
        e("v_cndmask_b32 v%d, v%d, v%d, vcc" % (o, o, g+3)); e("v_cndmask_b32 v%d, v%d, v%d, vcc" % (o+1, o+1, sx+3))
        e("v_mul_f32 v%d, %s, v%d" % (o+1, fhex(1.0/576.0), o+1))
        e("v_mul_f32 v%d, %s, v%d" % (o, fhex(1.0/576.0), o))
        e("v_fma_f32 v%d, -v%d, v%d, v%d" % (o, o+1, o+1, o))
        e("v_max_f32 v%d, 0, v%d" % (o, o))
        e("v_add_f32 v%d, %s, v%d" % (o, fhex(1e-5), o))
        e("v_rsq_f32 v%d, v%d" % (o, o))
    e("v_lshrrev_b32 v23, 2, v%d" % V_L15)
    e("v_lshlrev_b32 v50, 2, v%d" % V_L15)
    e("v_add_u32 v51, %d, v50" % LDS_ST)
    e("s_lshl_b32 s21, s17, 7")
    e("s_add_u32 s21, s21, 0x%x" % OFF_MEAN)
    e("v_cmp_eq_u32 vcc, v23, v%d" % V_Q)
    e("s_and_saveexec_b64 s[28:29], vcc")
    e("ds_write_b32 v51, v40")
    e("ds_write_b32 v51, v44 offset:64")
    e("s_cmp_lg_u32 s19, 0")
    e("s_cbranch_scc1 %s_nomean" % name)
    e("buffer_store_dword v41, v50, s[8:11], s21 offen")
    e("buffer_store_dword v45, v50, s[8:11], s21 offen offset:64")
    A.label("%s_nomean" % name)
    e("s_mov_b64 exec, s[28:29]")
    e("s_waitcnt lgkmcnt(0)")
    e("s_barrier")
    e("s_endpgm")
    A.label("%s_wt" % name)
    e("s_sub_u32 s16, s2, 256"); e("s_lshl_b32 s16, s16, 2"); e("s_add_u32 s16, s16, s18"); e("s_lshl_b32 s16, s16, 2")
    e("s_lshr_b32 s17, s16, 7"); e("s_lshr_b32 s19, s16, 5"); e("s_and_b32 s19, s19, 3"); e("s_and_b32 s20, s16, 31")
    e("v_and_b32 v2, 31, v1")
    e("v_lshrrev_b32 v3, 5, v1")
    e("s_lshl_b32 s21, s17, 5")
    e("v_add_u32 v2, s21, v2")
    e("v_cmp_eq_u32 vcc, 0, v2")
    e("v_mov_b32 v4, 0x120")
    e("s_nop 0")
    e("v_cndmask_b32 v4, v2, v4, vcc")
    e("s_lshl_b32 s22, s20, 1")
    e("v_add_u32 v5, s22, v3")
    e("v_and_b32 v6, 15, v5")
    e("v_lshrrev_b32 v7, 4, v5")
    e("v_lshlrev_b32 v7, 7, v7")
    e("v_add_u32 v6, v6, v7")
    e("s_lshl_b32 s22, s19, 9")
    e("v_add_u32 v6, s22, v6")
    e("s_movk_i32 s23, 578")
    e("v_mul_lo_u32 v6, v6, s23")
    e("v_lshl_add_u32 v6, v4, 1, v6")
    e("v_lshlrev_b32 v8, 13, v2")
    e("v_lshl_add_u32 v8, v5, 5, v8")
    e("s_lshl_b32 s22, s19, 11")
    e("s_add_u32 s22, s22, 0x%x" % OFF_WT)
    e("s_waitcnt lgkmcnt(0)")
    e("s_mov_b32 s8, s4"); e("s_mov_b32 s9, s5"); e("s_mov_b32 s10, 0x%x" % WS_BYTES); e("s_mov_b32 s11, 0x20000")
    e("s_mov_b32 s12, s36"); e("s_mov_b32 s13, s37"); e("s_mov_b32 s14, %d" % (S*289*2)); e("s_mov_b32 s15, 0x20000")
    e("s_mov_b32 s24, s38"); e("s_mov_b32 s25, s39"); e("s_mov_b32 s26, %d" % (S*289*2)); e("s_mov_b32 s27, 0x20000")
    for t in range(4):
        for nb in range(2):
            for r in range(4):
                off=(2*t + 16*nb + 32*r)*578
                e("s_mov_b32 s28, %d" % off)
                e("buffer_load_ushort v%d, v6, s[12:15], s28 offen" % (16+t*16+nb*8+r))
                e("buffer_load_ushort v%d, v6, s[24:27], s28 offen" % (16+t*16+nb*8+4+r))
    for t in range(4):
        e("s_waitcnt vmcnt(%d)" % (48-16*t + 2*t))
        b=16+t*16
        o=80+t*8
        for nb in range(2):
            for pl in range(2):
                s0=b+nb*8+pl*4
                e("v_lshl_or_b32 v%d, v%d, 16, v%d" % (o+nb*4+pl*2, s0+1, s0))
                e("v_lshl_or_b32 v%d, v%d, 16, v%d" % (o+nb*4+pl*2+1, s0+3, s0+2))
        e("buffer_store_dwordx4 %s, v8, s[8:11], s22 offen offset:%d" % (vr(o,4), 64*t))
        e("buffer_store_dwordx4 %s, v8, s[8:11], s22 offen offset:%d" % (vr(o+4,4), 64*t+16))
    A.label("%s_end" % name)
    e("s_endpgm")
    kd=KD_FMT.format(name=name, vgpr=212, sgpr=48, accum=212)
    return A.text(), kd, 36864+256, 256+NT_WT

if __name__=="__main__":
    import sys
    t,kd,lds,grid=gen_k1()
    hdr="; @launch kernel=k1_kernel grid=(%d,1,1) block=(256,1,1) lds=%d\n" % (grid,lds)
    open(sys.argv[1],"w").write(hdr+'.amdgcn_target "amdgcn-amd-amdhsa--gfx950"\n.text\n'+t+'.section .rodata,"a"\n'+kd)
```

```python
from asmlib import *
from layout import *
from swz import *
import math
NSW=162

def gen_k2(name="k2_kernel", flags=""):
    A=Asm(); e=A.e
    A.raw(".globl %s\n.p2align 8\n.type %s,@function\n%s:" % (name,name,name))
    e("s_cmp_ge_u32 s2, %d" % (288+NSW))
    e("s_cbranch_scc1 %s_end" % name)
    e("s_load_dwordx2 s[4:5], s[0:1], 80")
    e("s_load_dwordx2 s[6:7], s[0:1], 32")
    e("v_and_b32 v1, 63, v0")
    e("v_lshrrev_b32 v2, 6, v0")
    e("s_nop 0")
    e("v_readfirstlane_b32 s18, v2")
    e("s_cmp_ge_u32 s2, 288")
    e("s_cbranch_scc1 %s_swz" % name)
    E1=8192; E2=16384
    L15=2; Q=3; L16=4; T=5
    G=16
    E=40
    TW1=64
    TW2=80
    WR=96
    WF=104
    DA=120
    ACC=152
    TM=168
    e("v_and_b32 v%d, 15, v1" % L15)
    e("v_lshrrev_b32 v%d, 4, v1" % Q)
    e("v_lshlrev_b32 v%d, 4, v1" % L16)
    e("s_waitcnt lgkmcnt(0)")
    e("s_mov_b32 s8, s4"); e("s_mov_b32 s9, s5"); e("s_mov_b32 s10, 0x%x" % WS_BYTES); e("s_mov_b32 s11, 0x20000")
    e("s_lshl_b32 s20, s2, 13")
    e("s_lshl_b32 s21, s18, 11")
    e("s_add_u32 s22, s20, s21")
    e("s_add_u32 s23, s22, 0x%x" % OFF_XP)
    e("s_mov_b32 m0, s21")
    e("s_nop 0")
    e("buffer_load_dwordx4 v%d, s[8:11], s23 offen lds" % L16)
    e("s_add_u32 m0, s21, 1024")
    e("s_add_u32 s23, s23, 1024")
    e("buffer_load_dwordx4 v%d, s[8:11], s23 offen lds" % L16)
    e("v_lshlrev_b32 v%d, 5, v1" % T)
    e("s_add_u32 s24, s22, 0x%x" % OFF_WT)
    e("buffer_load_dwordx4 %s, v%d, s[8:11], s24 offen" % (vr(WR,4), T))
    e("buffer_load_dwordx4 %s, v%d, s[8:11], s24 offen offset:16" % (vr(WR+4,4), T))
    fl15=6; fq4=7; na=8; idx=9; a0=10
    e("v_cvt_f32_u32 v%d, v%d" % (fl15, L15))
    e("v_lshlrev_b32 v%d, 2, v%d" % (fq4, Q))
    e("v_cvt_f32_u32 v%d, v%d" % (fq4, fq4))
    e("s_lshl_b32 s25, s18, 4")
    e("v_cvt_f32_u32 v%d, s25" % 15)
    def block(dst, n_expr_reg, kbase, inv):
        e("v_add_f32 v%d, %s, v%d" % (idx, fhex(float(kbase)), fq4))
        e("v_mul_f32 v%d, v%d, v%d" % (na, n_expr_reg, idx))
        for i in range(4):
            if i==0: e("v_mov_b32 v%d, v%d" % (a0, na))
            else: e("v_fmamk_f32 v%d, v%d, %s, v%d" % (a0+i, n_expr_reg, fhex(float(i)), na))
        for i in range(4): e("v_cos_f32 v%d, v%d" % (TM+i, a0+i))
        for i in range(4): e("v_sin_f32 v%d, v%d" % (TM+4+i, a0+i))
        e("v_cvt_pk_bf16_f32 v%d, v%d, v%d" % (dst+2, TM, TM+1))
        e("v_cvt_pk_bf16_f32 v%d, v%d, v%d" % (dst+3, TM+2, TM+3))
        e("v_cvt_pk_bf16_f32 v%d, v%d, v%d" % (dst+4, TM+4, TM+5))
        e("v_cvt_pk_bf16_f32 v%d, v%d, v%d" % (dst+5, TM+6, TM+7))
        e("v_xor_b32 v%d, 0x80008000, v%d" % (dst, dst+4))
        e("v_xor_b32 v%d, 0x80008000, v%d" % (dst+1, dst+5))
    nreg=TM+8
    for a in range(2):
        e("v_add_f32 v%d, %s, v%d" % (nreg, fhex(16.0*a), fl15))
        e("v_mul_f32 v%d, %s, v%d" % (nreg, fhex(1.0/32), nreg))
        for b in range(2): block(G+(a*2+b)*6, nreg, 16*b, None)
    e("v_add_f32 v%d, v15, v%d" % (nreg, fl15))
    e("v_mul_f32 v%d, %s, v%d" % (nreg, fhex(1.0/64), nreg))
    for wp in range(4): block(E+wp*6, nreg, 16*wp, None)
    e("v_add_f32 v%d, v15, v%d" % (idx, fq4))
    for nb in range(2):
        e("v_add_f32 v%d, %s, v%d" % (nreg, fhex(16.0*nb), fl15))
        e("v_mul_f32 v%d, %s, v%d" % (nreg, fhex(1.0/2048), nreg))
        e("v_mul_f32 v%d, v%d, v%d" % (na, nreg, idx))
        for r in range(4):
            if r==0: e("v_mov_b32 v%d, v%d" % (a0, na))
            else: e("v_fmamk_f32 v%d, v%d, %s, v%d" % (a0+r, nreg, fhex(float(r)), na))
        for r in range(4): e("v_cos_f32 v%d, v%d" % (TW1+nb*8+r, a0+r))
        for r in range(4): e("v_sin_f32 v%d, v%d" % (TW1+nb*8+4+r, a0+r))
    e("v_add_f32 v%d, v15, v%d" % (nreg, fl15))
    e("v_mul_f32 v%d, %s, v%d" % (nreg, fhex(1.0/2048), nreg))
    for nb in range(2):
        e("v_add_f32 v%d, %s, v%d" % (idx, fhex(16.0*nb), fq4))
        e("v_mul_f32 v%d, v%d, v%d" % (na, nreg, idx))
        for r in range(4):
            if r==0: e("v_mov_b32 v%d, v%d" % (a0, na))
            else: e("v_fmamk_f32 v%d, v%d, %s, v%d" % (a0+r, nreg, fhex(float(r)), na))
        for r in range(4): e("v_cos_f32 v%d, v%d" % (TW2+nb*8+r, a0+r))
        for r in range(4): e("v_sin_f32 v%d, v%d" % (TW2+nb*8+4+r, a0+r))
    ta=5
    e("v_lshrrev_b32 v%d, 2, v%d" % (10, L15))
    e("v_lshl_add_u32 v%d, v%d, 2, v%d" % (10, Q, 10))
    e("v_lshlrev_b32 v%d, 7, v%d" % (10, 10))
    e("v_and_b32 v%d, 3, v%d" % (11, L15))
    e("v_lshl_add_u32 v%d, v%d, 3, v%d" % (10, 11, 10))
    e("s_lshl_b32 s25, s18, 5")
    e("v_add_u32 v%d, s25, v%d" % (ta, 10))
    xa=6
    e("v_add_u32 v%d, s21, v%d" % (xa, L16))
    e("s_waitcnt vmcnt(2)")
    e("s_barrier")
    for ks in range(2):
        e("ds_read_b64_tr_b16 %s, v%d offset:%d" % (vr(DA+ks*4,2), ta, ks*2048))
        e("ds_read_b64_tr_b16 %s, v%d offset:%d" % (vr(DA+ks*4+2,2), ta, 4096+ks*2048))
    e("s_waitcnt lgkmcnt(0)")
    RE=lambda base: vr(base+2,4)
    IM=lambda base: vr(base,4)
    def acc(part,nb): return ACC+(part*2+nb)*4
    for ks in range(2):
        for nb in range(2):
            for part in range(2):
                g=G+(nb*2+ks)*6
                d=vr(acc(part,nb),4)
                e("v_mfma_f32_16x16x32_bf16 %s, %s, %s, %s" % (d, vr(DA+ks*4,4), (RE,IM)[part](g), "0" if ks==0 else d))
    e("s_waitcnt vmcnt(0)")
    for nb in range(2):
        for pl in range(2):
            for h in range(2):
                raw=WR+nb*4+pl*2+h
                e("v_lshlrev_b32 v%d, 16, v%d" % (WF+nb*8+pl*4+2*h, raw))
                e("v_and_b32 v%d, 0xffff0000, v%d" % (WF+nb*8+pl*4+2*h+1, raw))
    def twiddle_pack(tw, dst, conj_filter=False):
        for nb in range(2):
            re=acc(0,nb); im=acc(1,nb)
            c=tw+nb*8; s=tw+nb*8+4
            for r in range(4):
                if not conj_filter:
                    e("v_mul_f32 v%d, v%d, v%d" % (TM+r, re+r, c+r))
                    e("v_mul_f32 v%d, v%d, v%d" % (TM+4+r, im+r, c+r))
                else:
                    e("v_mul_f32 v%d, v%d, v%d" % (TM+r, re+r, c+r))
                    e("v_mul_f32_e64 v%d, -v%d, v%d" % (TM+4+r, re+r, s+r))
            for r in range(4):
                if not conj_filter:
                    e("v_fma_f32 v%d, v%d, v%d, v%d" % (TM+r, im+r, s+r, TM+r))
                    e("v_fma_f32 v%d, -v%d, v%d, v%d" % (TM+4+r, re+r, s+r, TM+4+r))
                else:
                    e("v_fma_f32 v%d, -v%d, v%d, v%d" % (TM+r, im+r, s+r, TM+r))
                    e("v_fma_f32 v%d, -v%d, v%d, v%d" % (TM+4+r, im+r, c+r, TM+4+r))
            e("v_cvt_pk_bf16_f32 v%d, v%d, v%d" % (dst+nb*4, TM, TM+1))
            e("v_cvt_pk_bf16_f32 v%d, v%d, v%d" % (dst+nb*4+1, TM+2, TM+3))
            e("v_cvt_pk_bf16_f32 v%d, v%d, v%d" % (dst+nb*4+2, TM+4, TM+5))
            e("v_cvt_pk_bf16_f32 v%d, v%d, v%d" % (dst+nb*4+3, TM+6, TM+7))
    PK=TM+8
    def exchange(base):
        for nb in range(2):
            e("ds_write_b128 v%d, %s offset:%d" % (xa, vr(PK+nb*4,4), base+nb*1024))
        e("s_waitcnt lgkmcnt(0)")
        e("s_barrier")
        for wp in range(4):
            for nb in range(2):
                e("ds_read_b128 %s, v%d offset:%d" % (vr(DA+(wp*2+nb)*4,4), L16, base+wp*2048+nb*1024))
    twiddle_pack(TW1, PK)
    exchange(E1)
    for wp in range(4):
        e("s_waitcnt lgkmcnt(%d)" % (6-2*wp))
        for nb in range(2):
            for part in range(2):
                d=vr(acc(part,nb),4)
                e("v_mfma_f32_16x16x32_bf16 %s, %s, %s, %s" % (d, (RE,IM)[part](E+wp*6), vr(DA+(wp*2+nb)*4,4), "0" if wp==0 else d))
    e("s_nop 7")
    twiddle_pack(WF, PK, conj_filter=True)
    exchange(E2)
    for wp in range(4):
        e("s_waitcnt lgkmcnt(%d)" % (6-2*wp))
        for nb in range(2):
            for part in range(2):
                d=vr(acc(part,nb),4)
                e("v_mfma_f32_16x16x32_bf16 %s, %s, %s, %s" % (d, vr(DA+(wp*2+nb)*4,4), (RE,IM)[part](E+wp*6), "0" if wp==0 else d))
    e("s_nop 7")
    twiddle_pack(TW2, PK)
    e("s_nop 1")
    for nb in range(2):
        for sb in range(2):
            for part in range(2):
                d=vr(acc(part,sb),4)
                e("v_mfma_f32_16x16x32_bf16 %s, %s, %s, %s" % (d, vr(PK+nb*4,4), (RE,IM)[part](G+(sb*2+nb)*6), "0" if nb==0 else d))
    e("v_lshlrev_b32 v10, 7, v%d" % L15)
    e("v_lshl_add_u32 v10, v%d, 3, v10" % Q)
    e("s_lshl_b32 s25, s18, 5"); e("s_add_u32 s25, s25, s20"); e("s_add_u32 s25, s25, 0x%x" % OFF_ZP)
    e("s_add_u32 s26, s25, 4096")
    e("s_nop 4")
    for part in range(2):
        for sb in range(2):
            a=acc(part,sb)
            o=TM+(part*2+sb)*2
            e("v_cvt_pk_bf16_f32 v%d, v%d, v%d" % (o, a, a+1))
            e("v_cvt_pk_bf16_f32 v%d, v%d, v%d" % (o+1, a+2, a+3))
            e("buffer_store_dwordx2 %s, v10, s[8:11], s%d offen offset:%d" % (vr(o,2), 25+part, sb*2048))
    e("s_endpgm")
    A.label("%s_swz" % name)
    e("s_sub_u32 s16, s2, 288"); e("s_lshl_b32 s16, s16, 2"); e("s_add_u32 s16, s16, s18")
    e("s_waitcnt lgkmcnt(0)")
    e("s_mov_b32 s8, s4"); e("s_mov_b32 s9, s5"); e("s_mov_b32 s10, 0x%x" % WS_BYTES); e("s_mov_b32 s11, 0x20000")
    e("s_mov_b32 s12, s6"); e("s_mov_b32 s13, s7"); e("s_mov_b32 s14, %d" % (D*F*2)); e("s_mov_b32 s15, 0x20000")
    emit_w1_role(A,16,flags)
    A.label("%s_end" % name)
    e("s_endpgm")
    kd=KD_FMT.format(name=name, vgpr=184, sgpr=48, accum=184)
    return A.text(), kd, 32768, 288+NSW

if __name__=="__main__":
    import sys
    t,kd,lds,grid=gen_k2()
    hdr="; @launch kernel=k2_kernel grid=(%d,1,1) block=(256,1,1) lds=%d\n" % (grid,lds)
    open(sys.argv[1],"w").write(hdr+'.amdgcn_target "amdgcn-amd-amdhsa--gfx950"\n.text\n'+t+'.section .rodata,"a"\n'+kd)
```

```python
from asmlib import *
from layout import *
from swz import *
import math
NSW=162
NMAIN=192

def gen_k3(name="k3_kernel", flags="", touch=True):
    A=Asm(); e=A.e
    A.raw(".globl %s\n.p2align 8\n.type %s,@function\n%s:" % (name,name,name))
    e("s_cmp_ge_u32 s2, %d" % (NMAIN+NSW))
    e("s_cbranch_scc1 %s_end" % name)
    e("s_load_dwordx2 s[4:5], s[0:1], 80")
    e("s_load_dwordx2 s[6:7], s[0:1], 0")
    e("s_load_dwordx2 s[36:37], s[0:1], 48")
    e("v_and_b32 v1, 63, v0")
    e("v_lshrrev_b32 v2, 6, v0")
    e("s_nop 0")
    e("v_readfirstlane_b32 s18, v2")
    e("s_cmp_ge_u32 s2, %d" % NMAIN)
    e("s_cbranch_scc1 %s_swz" % name)
    L15=2; Q=3; VD0=4; VD1=5; RA=6
    DL=14; T2=15; BE=16; XO=17; MO=18
    T=19
    GEN=24
    AFR=44
    BFR=116
    ACC=148
    XR=180
    MN=196
    e("s_and_b32 s16, s2, 7"); e("s_lshr_b32 s17, s2, 3")
    e("s_mul_hi_u32 s19, s17, 0x2aaaaaab")
    e("s_mul_i32 s20, s19, 6"); e("s_sub_u32 s20, s17, s20")
    e("s_lshl_b32 s19, s19, 3"); e("s_add_u32 s19, s19, s16")
    e("v_and_b32 v%d, 15, v1" % L15)
    e("v_lshrrev_b32 v%d, 4, v1" % Q)
    e("v_bfe_u32 v%d, v1, 3, 1" % T)
    e("v_lshl_add_u32 v%d, v%d, 2, v%d" % (T, Q, T))
    e("v_lshlrev_b32 v%d, 12, v%d" % (T, T))
    e("v_and_b32 v%d, 1, v%d" % (T+1, Q))
    e("v_lshlrev_b32 v%d, 1, v%d" % (T+1, T+1))
    e("v_and_b32 v%d, 7, v1" % (T+2))
    e("v_xor_b32 v%d, v%d, v%d" % (T+2, T+2, T+1))
    e("v_lshl_add_u32 v%d, v%d, 4, v%d" % (VD0, T+2, T))
    e("v_xor_b32 v%d, 64, v%d" % (VD1, VD0))
    e("s_waitcnt lgkmcnt(0)")
    e("s_mov_b32 s8, s4"); e("s_mov_b32 s9, s5"); e("s_mov_b32 s10, 0x%x" % WS_BYTES); e("s_mov_b32 s11, 0x20000")
    e("s_mov_b32 s12, s6"); e("s_mov_b32 s13, s7"); e("s_mov_b32 s14, %d" % (S*D*2)); e("s_mov_b32 s15, 0x20000")
    e("s_mul_i32 s21, s18, 18")
    e("s_cmp_ge_u32 s18, 2")
    e("s_cselect_b32 s22, 36, 0")
    e("s_cselect_b32 s23, 2, 0")
    e("s_sub_u32 s22, s21, s22"); e("s_lshl_b32 s22, s22, 4"); e("s_add_u32 s22, s22, s23"); e("s_lshl_b32 s22, s22, 12")
    e("s_lshl_b32 s23, s19, 7"); e("s_add_u32 s22, s22, s23"); e("s_add_u32 s22, s22, 0x%x" % OFF_ZP)
    e("s_lshl_b32 s23, s21, 10")
    for n in range(18):
        e("s_add_u32 m0, s23, %d" % (n*1024))
        if n>0: e("s_add_u32 s22, s22, %d" % (16*4096))
        else: e("s_nop 0")
        e("buffer_load_dwordx4 v%d, s[8:11], s22 offen lds" % (VD0,VD1)[n&1])
    e("s_cmp_eq_u32 s18, 3")
    e("s_cbranch_scc1 %s_w3" % name)
    e("s_mul_i32 s24, s20, 48"); e("s_lshl_b32 s25, s18, 4"); e("s_add_u32 s24, s24, s25")
    e("s_movk_i32 s25, 1152")
    e("v_mul_lo_u32 v%d, v%d, s25" % (XO, L15))
    e("v_lshl_add_u32 v%d, v%d, 3, v%d" % (XO, Q, XO))
    e("s_mul_i32 s26, s19, %d" % (64*1152)); e("s_lshl_b32 s27, s24, 1"); e("s_add_u32 s26, s26, s27")
    for nb in range(4):
        e("s_add_u32 s27, s26, %d" % (nb*16*1152))
        e("buffer_load_dwordx2 %s, v%d, s[12:15], s27 offen" % (vr(XR+nb*4,2), XO))
        e("buffer_load_dwordx2 %s, v%d, s[12:15], s27 offen offset:576" % (vr(XR+nb*4+2,2), XO))
    e("v_lshlrev_b32 v%d, 2, v%d" % (MO, L15))
    e("s_lshl_b32 s27, s19, 8"); e("s_add_u32 s27, s27, 0x%x" % OFF_MEAN)
    for nb in range(4):
        e("buffer_load_dword v%d, v%d, s[8:11], s27 offen offset:%d" % (MN+nb, MO, nb*64))
    e("v_lshrrev_b32 v%d, 2, v%d" % (T, L15))
    e("v_lshl_add_u32 v%d, v%d, 3, v%d" % (T+1, Q, T))
    e("v_lshlrev_b32 v%d, 7, v%d" % (T+1, T+1))
    e("v_lshrrev_b32 v%d, 1, v%d" % (T, T))
    e("v_and_b32 v%d, 1, v%d" % (T+2, Q))
    e("v_lshl_add_u32 v%d, v%d, 1, v%d" % (T, T+2, T))
    e("v_lshl_add_u32 v%d, v%d, 5, v%d" % (T+1, T, T+1))
    e("v_and_b32 v%d, 3, v%d" % (T, L15))
    e("v_lshl_add_u32 v%d, v%d, 3, v%d" % (T+1, T, T+1))
    for nb in range(4):
        e("v_xor_b32 v%d, %d, v%d" % (RA+nb, nb<<5, T+1))
        e("v_add_u32 v%d, 0x10000, v%d" % (RA+4+nb, RA+nb))
    e("v_add_u32 v%d, s24, v%d" % (T, L15))
    e("v_and_b32 v%d, 1, v%d" % (T+3, T))
    e("v_cvt_f32_u32 v%d, v%d" % (T, T))
    e("v_mul_f32 v%d, %s, v%d" % (DL, fhex(1.0/576.0), T))
    e("v_lshlrev_b32 v%d, 31, v%d" % (T+3, T+3))
    e("v_or_b32 v%d, 0.5, v%d" % (T+3, T+3))
    e("v_mul_f32 v%d, %s, v%d" % (T, fhex(32.0), DL))
    e("v_fract_f32 v%d, v%d" % (T, T))
    e("v_cos_f32 v%d, v%d" % (T, T))
    e("v_lshlrev_b32 v%d, 3, v%d" % (T+1, Q))
    e("v_cvt_f32_u32 v%d, v%d" % (T+1, T+1))
    e("v_add_f32 v%d, v%d, v%d" % (T2, T, T))
    e("v_mul_f32 v%d, v%d, v%d" % (BE, DL, T+1))
    e("v_add_f32 v%d, %s, v%d" % (T+2, fhex(-0.25), BE))
    G=[GEN,GEN+8]
    def pack(t,g,patch=False):
        for j in range(4):
            a=g+2*j
            if patch and j==0:
                e("v_cmp_eq_u32 vcc, 0, v%d" % Q); e("s_nop 1")
                e("v_cndmask_b32 v40, v%d, v%d, vcc" % (g, T+3))
                a=None
                e("v_cvt_pk_bf16_f32 v%d, v40, v%d" % (AFR+t*4, g+1))
            else:
                e("v_cvt_pk_bf16_f32 v%d, v%d, v%d" % (AFR+t*4+j, a, a+1))
    for seq in range(2):
        for st in range(2):
            g=G[st]
            for i in range(8):
                kofs=32*st+2*(i>>1)+seq
                base = BE if (i&1)==0 else T+2
                if kofs==0: e("v_cos_f32 v%d, v%d" % (g+i, base))
                else: e("v_fmamk_f32 v%d, v%d, %s, v%d" % (g+i, DL, fhex(float(kofs)), base))
            for i in range(8):
                kofs=32*st+2*(i>>1)+seq
                if kofs: e("v_cos_f32 v%d, v%d" % (g+i, g+i))
            e("s_nop 0")
            pack(seq*9+st, g, patch=(seq==0 and st==0))
        for st in range(2,9):
            g=G[st&1]; gp=G[(st-1)&1]
            for i in range(8): e("v_fma_f32 v%d, v%d, v%d, -v%d" % (g+i, T2, gp+i, g+i))
            pack(seq*9+st,g)
    e("s_waitcnt vmcnt(12)")
    e("s_barrier")
    def rdB(t,buf):
        for nb in range(4):
            v=RA+nb if t<16 else RA+4+nb
            off=(t*4096) if t<16 else (t-16)*4096
            e("ds_read_b64_tr_b16 %s, v%d offset:%d" % (vr(BFR+buf*16+nb*4,2), v, off))
            e("ds_read_b64_tr_b16 %s, v%d offset:%d" % (vr(BFR+buf*16+nb*4+2,2), v, off+512))
    rdB(0,0)
    for t in range(18):
        par=t//9
        e("s_waitcnt lgkmcnt(4)")
        if t<17: rdB(t+1,(t+1)&1)
        for nb in range(4):
            if nb==2: e("s_waitcnt lgkmcnt(%d)" % (8 if t<17 else 0))
            d=vr(ACC+par*16+nb*4,4)
            e("v_mfma_f32_16x16x32_bf16 %s, %s, %s, %s" % (d, vr(AFR+t*4,4), vr(BFR+(t&1)*16+nb*4,4), "0" if t%9==0 else d))
    sc=2.0/(2048.0*576.0)
    e("s_mov_b32 s28, %s" % fhex(sc))
    e("s_add_u32 s26, s26, 0x%x" % OFF_HC)
    e("s_waitcnt vmcnt(0)")
    e("s_nop 4")
    for nb in range(4):
        E=ACC+nb*4; O=ACC+16+nb*4
        for half in range(2):
            xr=XR+nb*4+half*2
            t0=24
            e("v_lshlrev_b32 v%d, 16, v%d" % (t0, xr)); e("v_and_b32 v%d, 0xffff0000, v%d" % (t0+1, xr))
            e("v_lshlrev_b32 v%d, 16, v%d" % (t0+2, xr+1)); e("v_and_b32 v%d, 0xffff0000, v%d" % (t0+3, xr+1))
            for r in range(4): e("v_sub_f32 v%d, v%d, v%d" % (t0+r, t0+r, MN+nb))
            for r in range(4):
                if half==0: e("v_add_f32 v%d, v%d, v%d" % (t0+4+r, E+r, O+r))
                else: e("v_sub_f32 v%d, v%d, v%d" % (t0+4+r, E+r, O+r))
            for r in range(4): e("v_fma_f32 v%d, v%d, s28, v%d" % (t0+r, t0+4+r, t0+r))
            o=32+((nb*2+half)&1)*2
            e("v_cvt_pk_bf16_f32 v%d, v%d, v%d" % (o, t0, t0+1))
            e("v_cvt_pk_bf16_f32 v%d, v%d, v%d" % (o+1, t0+2, t0+3))
            e("s_add_u32 s27, s26, %d" % (nb*16*1152))
            e("buffer_store_dwordx2 %s, v%d, s[8:11], s27 offen offset:%d" % (vr(o,2), XO, half*576))
    e("s_endpgm")
    A.label("%s_w3" % name)
    if touch:
        e("s_mul_i32 s24, s16, 663552"); e("s_mul_i32 s25, s17, %d" % (216*128)); e("s_add_u32 s24, s24, s25"); e("s_add_u32 s24, s24, 0x%x" % OFF_W1S)
        e("v_lshlrev_b32 v30, 7, v1")
        for i in range(4):
            if i==3:
                e("v_min_u32 v31, 23, v1"); e("v_lshlrev_b32 v30, 7, v31")
            e("buffer_load_dword v%d, v30, s[8:11], s24 offen" % (24+i))
            e("s_add_u32 s24, s24, 8192")
        e("s_waitcnt vmcnt(4)")
    else:
        e("s_waitcnt vmcnt(0)")
    e("s_barrier")
    e("s_endpgm")
    A.label("%s_swz" % name)
    e("s_sub_u32 s16, s2, %d" % NMAIN); e("s_lshl_b32 s16, s16, 2"); e("s_add_u32 s16, s16, s18")
    e("s_waitcnt lgkmcnt(0)")
    e("s_mov_b32 s8, s4"); e("s_mov_b32 s9, s5"); e("s_mov_b32 s10, 0x%x" % WS_BYTES); e("s_mov_b32 s11, 0x20000")
    e("s_mov_b32 s12, s36"); e("s_mov_b32 s13, s37"); e("s_mov_b32 s14, %d" % (D*F*2)); e("s_mov_b32 s15, 0x20000")
    emit_w2_role(A,16,flags)
    A.label("%s_end" % name)
    e("s_endpgm")
    kd=KD_FMT.format(name=name, vgpr=200, sgpr=48, accum=200)
    return A.text(), kd, 73728, NMAIN+NSW

if __name__=="__main__":
    import sys
    sys.path.insert(0,".")
    from k1 import gen_k1
    from k2 import gen_k2
    parts=[("k1_kernel",)+gen_k1(), ("k2_kernel",)+gen_k2(), ("k3_kernel",)+gen_k3()]
    hdr="".join("; @launch kernel=%s grid=(%d,1,1) block=(256,1,1) lds=%d\n" % (n,g,l) for n,t,kd,l,g in parts)
    s=hdr+'.amdgcn_target "amdgcn-amd-amdhsa--gfx950"\n.text\n'+"".join(p[1] for p in parts)+'.section .rodata,"a"\n'+"".join(p[2] for p in parts)
    open(sys.argv[1],"w").write(s)
```

```python
from asmlib import *
from layout import *
import math

def gen_k4(name="k4_kernel", P=10, store_flags="", gelu=True, warm=True, dbg_time=False, noload=False, nolds=False, nofill=False, pk=False, P0=2):
    A = Asm()
    e = A.e
    V_LANE=1; V_L16=2
    V_AE,V_AO,V_AE8,V_AO8,V_HE,V_HO,V_HE8,V_HO8 = 3,4,5,6,7,8,9,10
    V_WA=11
    V_GE,V_GO,V_GE8,V_GO8 = 14,15,16,17
    V_RSTD=18
    V_BIAS=22
    V_BRAW=34
    V_C1=52; V_C2=53
    V_X=54; V_T=58
    V_PK=62
    V_GRAM=68
    V_ST=72
    ACC=[80,128]
    V_TMP=176
    A_RING=0
    A_ACT=12*P
    A_GR=A_ACT+32
    A_DUMMY=A_GR+8
    NAGPR=A_DUMMY+4
    LDS_H=73728; LDS_RSTD=147456
    vm=VQ("vm",63); lg=VQ("lgkm",15)
    stamps=[]
    def stamp(nm):
        if not dbg_time: return
        i=len(stamps); stamps.append(nm)
        A.e("s_memtime s[%d:%d]" % (44+4*i,45+4*i)); A.e("s_memrealtime s[%d:%d]" % (46+4*i,47+4*i))

    A.raw(".globl %s\n.p2align 8\n.type %s,@function\n%s:" % (name,name,name))
    e("s_cmp_ge_u32 s2, 256")
    e("s_cbranch_scc1 %s_end" % name)
    e("s_load_dwordx2 s[4:5], s[0:1], 80")
    e("s_load_dwordx2 s[6:7], s[0:1], 40")
    if dbg_time:
        e("s_load_dwordx2 s[30:31], s[0:1], 72")
        pass
    stamp("start")
    e("v_and_b32 v%d, 63, v0" % V_LANE)
    e("v_lshrrev_b32 v%d, 6, v0" % V_TMP)
    e("s_and_b32 s16, s2, 7")
    e("s_lshr_b32 s17, s2, 3")
    e("v_readfirstlane_b32 s18, v%d" % V_TMP)
    e("v_lshlrev_b32 v%d, 4, v%d" % (V_L16, V_LANE))
    T=V_TMP
    e("v_and_b32 v%d, 15, v%d" % (T+1, V_LANE))
    e("v_lshrrev_b32 v%d, 4, v%d" % (T+2, V_LANE))
    e("v_lshrrev_b32 v%d, 1, v%d" % (T+3, T+1))
    e("v_xor_b32 v%d, v%d, v%d" % (T+4, T+2, T+3))
    e("v_lshlrev_b32 v%d, 4, v%d" % (T+4, T+4))
    e("v_lshl_add_u32 v%d, v%d, 7, v%d" % (V_AE, T+1, T+4))
    e("v_xor_b32 v%d, 64, v%d" % (V_AO, V_AE))
    e("v_add_u32 v%d, 0x10000, v%d" % (V_AE8, V_AE))
    e("v_add_u32 v%d, 0x10000, v%d" % (V_AO8, V_AO))
    e("v_add_u32 v%d, %d, v%d" % (V_HE, LDS_H, V_AE))
    e("v_add_u32 v%d, %d, v%d" % (V_HO, LDS_H, V_AO))
    e("v_add_u32 v%d, %d, v%d" % (V_HE8, LDS_H+0x10000, V_AE))
    e("v_add_u32 v%d, %d, v%d" % (V_HO8, LDS_H+0x10000, V_AO))
    e("s_lshl_b32 s19, s18, 11")
    e("v_add_u32 v%d, s19, v%d" % (V_GE, V_AE))
    e("v_add_u32 v%d, s19, v%d" % (V_GO, V_AO))
    e("v_add_u32 v%d, s19, v%d" % (V_GE8, V_AE8))
    e("v_add_u32 v%d, s19, v%d" % (V_GO8, V_AO8))
    e("s_mul_i32 s19, s18, 6")
    e("v_lshrrev_b32 v%d, 1, v%d" % (T+5, T+2))
    e("v_add_u32 v%d, s19, v%d" % (T+5, T+5))
    e("v_and_b32 v%d, 1, v%d" % (T+6, T+2))
    e("v_lshlrev_b32 v%d, 3, v%d" % (T+6, T+6))
    e("v_lshl_add_u32 v%d, v%d, 7, v%d" % (T+6, T+1, T+6))
    e("v_add_u32 v%d, %d, v%d" % (T+6, LDS_H, T+6))
    for mb in range(3):
        e("v_add_u32 v%d, %d, v%d" % (T+7, 2*mb, T+5))
        e("v_lshrrev_b32 v%d, 3, v%d" % (T+8, T+7))
        e("v_and_b32 v%d, 7, v%d" % (T+7, T+7))
        e("v_xor_b32 v%d, v%d, v%d" % (T+7, T+7, T+3))
        e("v_lshlrev_b32 v%d, 4, v%d" % (T+7, T+7))
        e("v_lshl_add_u32 v%d, v%d, 13, v%d" % (T+7, T+8, T+7))
        e("v_add_u32 v%d, v%d, v%d" % (V_WA+mb, T+7, T+6))
    e("v_lshrrev_b32 v%d, 3, v%d" % (T+9, V_LANE))
    e("s_lshl_b32 s19, s18, 4")
    e("v_add_u32 v%d, s19, v%d" % (T+9, T+9))
    e("s_movk_i32 s23, 1152")
    e("v_mul_lo_u32 v%d, v%d, s23" % (T+9, T+9))
    e("v_and_b32 v%d, 7, v%d" % (T+10, V_LANE))
    e("v_xor_b32 v%d, v%d, v%d" % (T+11, T+10, T+2))
    e("v_xor_b32 v%d, 4, v%d" % (T+12, T+11))
    e("v_lshl_add_u32 v%d, v%d, 4, v%d" % (T+11, T+11, T+9))
    e("v_lshl_add_u32 v%d, v%d, 4, v%d" % (T+12, T+12, T+9))
    e("v_add_u32 v%d, %d, v%d" % (T+12, 8*1152, T+12))
    c1 = 2.0*math.sqrt(2.0/math.pi)*math.log2(math.e); c2 = c1*0.044715
    e("v_mov_b32 v%d, %s" % (V_C1, fhex(-c1)))
    e("v_mov_b32 v%d, %s" % (V_C2, fhex(-c2)))
    e("s_waitcnt lgkmcnt(0)")
    stamp("karg")
    e("s_mov_b32 s8, s4"); e("s_mov_b32 s9, s5"); e("s_mov_b32 s10, 0x%x" % WS_BYTES); e("s_mov_b32 s11, 0x20000")
    e("s_mov_b32 s12, s6"); e("s_mov_b32 s13, s7"); e("s_mov_b32 s14, %d" % (F*2)); e("s_mov_b32 s15, 0x20000")
    e("s_mul_i32 s23, s17, %d" % (64*1152))
    e("s_add_u32 s23, s23, 0x%x" % OFF_HC)
    e("s_lshl_b32 s24, s18, 11")
    dma_last=None
    for cb in range(9):
        for g in range(2):
            e("s_add_u32 m0, s24, %d" % (cb*8192 + g*1024))
            if g==0 and cb>0:
                e("s_add_u32 s23, s23, 128")
            else:
                e("s_nop 0")
            e("buffer_load_dwordx4 v%d, s[8:11], s23 offen lds" % (T+11+g))
            dma_last=vm.issue()
    stamp("dma_issued")
    e("s_mul_i32 s25, s16, 12")
    e("s_mul_i32 s26, s18, 3")
    e("s_add_u32 s25, s25, s26")
    e("s_mul_i32 s25, s25, 55296")
    e("s_add_u32 s20, s25, 0x%x" % OFF_W1S)
    e("s_add_u32 s21, s25, 0x%x" % OFF_W2S)
    ring_ids={}
    def issue_w(t, mb):
        if noload and t>=P:
            ring_ids[(t,mb)]=ring_ids[(t%P,mb)]; return
        slot=t%P
        r=A_RING+slot*12+mb*4
        e("buffer_load_dwordx4 %s, v%d, s[8:11], s20 offen offset:%d" % (ar(r,4), V_L16, mb*1024))
        ring_ids[(t,mb)]=vm.issue()
    def adv_w(t):
        if t+1==54: e("s_mov_b32 s20, s21")
        else: e("s_add_u32 s20, s20, 3072")
    for t in range(P0):
        for mb in range(3): issue_w(t,mb)
        adv_w(t)
    nxt=[P0]
    def late_prologue():
      pass
    e("s_mul_i32 s25, s16, 1152")
    e("s_mul_i32 s26, s18, 288")
    e("s_add_u32 s25, s25, s26")
    e("v_lshlrev_b32 v%d, 3, v%d" % (T+13, T+2))
    bias_ids={}
    for c in range(3):
        for mb in range(3):
            e("buffer_load_dwordx2 %s, v%d, s[12:15], s25 offen offset:%d" % (vr(V_BRAW+(c*3+mb)*2,2), T+13, c*96+mb*32))
            bias_ids[(c,mb)]=vm.issue()
    if warm:
        e("s_lshl_b32 s26, s18, 6")
        e("v_add_u32 v%d, s26, v%d" % (T+14, V_LANE))
        e("v_min_u32 v%d, 161, v%d" % (T+14, T+14))
        e("v_lshlrev_b32 v%d, 7, v%d" % (T+14, T+14))
        e("s_mul_i32 s25, s16, 663552")
        e("s_mul_i32 s26, s17, 20736")
        e("s_add_u32 s25, s25, s26")
        e("s_add_u32 s26, s25, 0x%x" % OFF_W1S)
        e("buffer_load_dword a%d, v%d, s[8:11], s26 offen" % (A_DUMMY, T+14)); vm.issue()
        e("s_add_u32 s27, s25, 0x%x" % OFF_W2S)
        e("buffer_load_dword a%d, v%d, s[8:11], s27 offen" % (A_DUMMY+1, T+14)); vm.issue()
    e("s_lshl_b32 s25, s16, 5"); e("s_add_u32 s25, s25, s17"); e("s_lshl_b32 s25, s25, 2"); e("s_add_u32 s25, s25, s18")
    e("s_mul_i32 s25, s25, 18432")
    e("s_add_u32 s22, s25, 0x%x" % OFF_PART)
    stamp("all_issued")
    e(waitcnt(vm=vm.need(dma_last)))
    stamp("dma_done")
    e("s_barrier")
    act_ids={}
    def act_addr(t, nb):
        g1 = t<54
        ks = t%18
        cb=ks>>1; odd=ks&1
        if g1: regs=(V_AE,V_AO,V_AE8,V_AO8)
        else: regs=(V_HE,V_HO,V_HE8,V_HO8)
        if cb<8: return regs[odd], cb*8192+nb*2048
        return regs[2+odd], nb*2048
    def issue_act(t, nb):
        if nolds and t>=2:
            act_ids[(t,nb)]=act_ids[(t&1,nb)]; return
        r=A_ACT+(t&1)*16+nb*4
        v,off=act_addr(t,nb)
        e("ds_read_b128 %s, v%d offset:%d" % (ar(r,4), v, off))
        act_ids[(t,nb)]=lg.issue()
    gr_ids={}
    def issue_gr(t):
        ks=t; cb=ks>>1; odd=ks&1
        r=A_GR+(t&1)*4
        if cb<8: v,off=(V_GE,V_GO)[odd], cb*8192
        else: v,off=(V_GE8,V_GO8)[odd], 0
        e("ds_read_b128 %s, v%d offset:%d" % (ar(r,4), v, off))
        gr_ids[t]=lg.issue()
    for nb in range(4): issue_act(0,nb)
    issue_gr(0)

    def gelu_fillers(c, acc):
        L=[]
        def need_bias():
            n=vm.need(bias_ids[(c,2)])
            return waitcnt(vm=n)
        L.append(("call", need_bias))
        for mb in range(3):
            raw=V_BRAW+(c*3+mb)*2
            b=V_BIAS+mb*4
            L.append("v_lshlrev_b32 v%d, 16, v%d" % (b+0, raw))
            L.append("v_and_b32 v%d, 0xffff0000, v%d" % (b+1, raw))
            L.append("v_lshlrev_b32 v%d, 16, v%d" % (b+2, raw+1))
            L.append("v_and_b32 v%d, 0xffff0000, v%d" % (b+3, raw+1))
        k=0
        for mb in range(3):
            for nb in range(4):
                a=acc+(mb*4+nb)*4
                b=V_BIAS+mb*4
                pkr=V_PK+(k&1)*2
                k+=1
                if pk:
                    rs=V_RSTD+(nb&~1)
                    sel = "op_sel:[0,1,0] op_sel_hi:[1,1,1]" if nb&1 else "op_sel_hi:[1,0,1]"
                    for r in (0,2): L.append("v_pk_fma_f32 %s, %s, %s, %s %s" % (vr(V_X+r,2), vr(a+r,2), vr(rs,2), vr(b+r,2), sel))
                    for r in (0,2): L.append("v_pk_mul_f32 %s, %s, %s" % (vr(V_T+r,2), vr(V_X+r,2), vr(V_X+r,2)))
                    for r in (0,2): L.append("v_pk_fma_f32 %s, %s, %s, %s op_sel:[0,1,0] op_sel_hi:[1,1,0]" % (vr(V_T+r,2), vr(V_T+r,2), vr(V_C1,2), vr(V_C1,2)))
                    for r in (0,2): L.append("v_pk_mul_f32 %s, %s, %s" % (vr(V_T+r,2), vr(V_X+r,2), vr(V_T+r,2)))
                    for r in range(4): L.append("v_exp_f32 v%d, v%d" % (V_T+r, V_T+r))
                    for r in (0,2): L.append("v_pk_add_f32 %s, %s, 1.0 op_sel_hi:[1,0]" % (vr(V_T+r,2), vr(V_T+r,2)))
                    for r in range(4): L.append("v_rcp_f32 v%d, v%d" % (V_T+r, V_T+r))
                    for r in (0,2): L.append("v_pk_mul_f32 %s, %s, %s" % (vr(V_X+r,2), vr(V_X+r,2), vr(V_T+r,2)))
                else:
                  for r in range(4): L.append("v_fma_f32 v%d, v%d, v%d, v%d" % (V_X+r, a+r, V_RSTD+nb, b+r))
                if gelu and not pk:
                    for r in range(4): L.append("v_mul_f32 v%d, v%d, v%d" % (V_T+r, V_X+r, V_X+r))
                    for r in range(4): L.append("v_fma_f32 v%d, v%d, v%d, v%d" % (V_T+r, V_T+r, V_C2, V_C1))
                    for r in range(4): L.append("v_mul_f32 v%d, v%d, v%d" % (V_T+r, V_X+r, V_T+r))
                    for r in range(4): L.append("v_exp_f32 v%d, v%d" % (V_T+r, V_T+r))
                    for r in range(4): L.append("v_add_f32 v%d, 1.0, v%d" % (V_T+r, V_T+r))
                    for r in range(4): L.append("v_rcp_f32 v%d, v%d" % (V_T+r, V_T+r))
                    for r in range(4): L.append("v_mul_f32 v%d, v%d, v%d" % (V_X+r, V_X+r, V_T+r))
                L.append("v_cvt_pk_bf16_f32 v%d, v%d, v%d" % (pkr, V_X, V_X+1))
                L.append("v_cvt_pk_bf16_f32 v%d, v%d, v%d" % (pkr+1, V_X+2, V_X+3))
                L.append(("lds", "ds_write_b64 v%d, %s offset:%d" % (V_WA+mb, vr(pkr,2), c*24576+nb*2048)))
        return L
    def store_fillers(cc, acc):
        L=[]
        for jj in range(6):
            st=V_ST+(jj&1)*4
            for tt in range(2):
                a=acc+(2*jj+tt)*4
                L.append("v_cvt_pk_bf16_f32 v%d, v%d, v%d" % (st+2*tt, a, a+1))
                L.append("v_cvt_pk_bf16_f32 v%d, v%d, v%d" % (st+2*tt+1, a+2, a+3))
            L.append(("vm", "buffer_store_dwordx4 %s, v%d, s[8:11], s22 offen %s" % (vr(st,4), V_L16, store_flags)))
            L.append("s_add_u32 s22, s22, 1024")
        return L
    def stats_fillers():
        L=[]
        g=V_GRAM
        L.append("v_and_b32 v%d, 3, v%d" % (T+20, V_LANE))
        L.append("v_cmp_eq_u32 vcc, 1, v%d" % (T+20))
        L.append("s_nop 1")
        L.append("v_cndmask_b32 v%d, v%d, v%d, vcc" % (T+21, g, g+1))
        L.append("v_cmp_eq_u32 vcc, 2, v%d" % (T+20))
        L.append("s_nop 1")
        L.append("v_cndmask_b32 v%d, v%d, v%d, vcc" % (T+21, T+21, g+2))
        L.append("v_cmp_eq_u32 vcc, 3, v%d" % (T+20))
        L.append("s_nop 1")
        L.append("v_cndmask_b32 v%d, v%d, v%d, vcc" % (T+21, T+21, g+3))
        L.append("v_mov_b32 v%d, %s" % (T+22, fhex(1e-5)))
        L.append("v_fmac_f32 v%d, %s, v%d" % (T+22, fhex(1.0/576.0), T+21))
        L.append("v_rsq_f32 v%d, v%d" % (T+22, T+22))
        L.append("v_lshrrev_b32 v%d, 2, v%d" % (T+23, T+1))
        L.append("s_lshl_b32 s19, s18, 6")
        L.append("v_lshlrev_b32 v%d, 2, v%d" % (T+24, T+1))
        L.append("v_add_u32 v%d, s19, v%d" % (T+24, T+24))
        L.append("v_add_u32 v%d, %d, v%d" % (T+24, LDS_RSTD, T+24))
        L.append("v_cmp_eq_u32 vcc, v%d, v%d" % (T+23, T+2))
        L.append("s_and_saveexec_b64 s[28:29], vcc")
        L.append(("lds", "ds_write_b32 v%d, v%d" % (T+24, T+22)))
        L.append("s_mov_b64 exec, s[28:29]")
        return L

    def emit_filler(f):
        if isinstance(f,str): e(f)
        elif f[0]=="call":
            s=f[1]()
            if s: e(s)
        elif f[0]=="lds": e(f[1]); lg.issue()
        elif f[0]=="vm": e(f[1]); vm.issue()

    fill=[]
    fill_deadline=None
    for t in range(108):
        ph=t//18; ks=t%18
        acc=ACC[ph&1]
        if ks==0: stamp("ph%d"%ph)
        if ks==0:
            assert not fill, ("fillers left", t, len(fill))
            if ph==1: fill=gelu_fillers(0, ACC[0]); fill_deadline=36
            if ph==2: fill=gelu_fillers(1, ACC[1]); fill_deadline=54
            if ph==3: fill=gelu_fillers(2, ACC[0]); fill_deadline=65
            if ph==4: fill=store_fillers(0, ACC[1]); fill_deadline=90
            if ph==5: fill=store_fillers(1, ACC[0]); fill_deadline=108
        bar = t in (18,53,59,65)
        nv=vm.need(ring_ids[(t,2)])
        if bar:
            lg.drain(); nl=0
        else:
            last=act_ids[(t,3)]
            if t<18: last=max(last, gr_ids[t])
            nl=lg.need(last)
        w=waitcnt(vm=nv, lgkm=nl)
        if w: e(w)
        if bar: e("s_barrier")
        if t==18:
            e("v_lshlrev_b32 v%d, 2, v%d" % (T+25, T+1))
            e("v_add_u32 v%d, %d, v%d" % (T+25, LDS_RSTD, T+25))
            for nb in range(4):
                e("ds_read_b32 v%d, v%d offset:%d" % (V_RSTD+nb, T+25, nb*64)); rid=lg.issue()
            rstd_id=rid
        if nofill: fill=[]
        steps_left = (fill_deadline - t) if fill else 1
        nfill = -(-len(fill)//steps_left) if fill else 0
        mine=fill[:nfill]; fill=fill[nfill:]
        if t==18 and not nofill:
            def wr():
                n=lg.need(rstd_id); return waitcnt(lgkm=n)
            mine=mine[:13]+[("call",wr)]+mine[13:]
        per=[len(mine)*(i+1)//12 - len(mine)*i//12 for i in range(12)]
        pos=0
        todo=[n for n in range(nxt[0], min(t+P,107)+1)][:2]
        nxt[0]+=len(todo)
        for i in range(12):
            mb=i//4; nb=i%4
            wreg=ar(A_RING+(t%P)*12+mb*4,4)
            areg=ar(A_ACT+(t&1)*16+nb*4,4)
            d=vr(acc+i*4,4)
            e("v_mfma_f32_16x16x32_bf16 %s, %s, %s, %s" % (d, wreg, areg, "0" if ks==0 else d))
            if i<4 and t+1<108: issue_act(t+1,i)
            if i==4 and t<18:
                g=ar(A_GR+(t&1)*4,4)
                e("v_mfma_f32_16x16x32_bf16 %s, %s, %s, %s" % (vr(V_GRAM,4), g, g, "0" if t==0 else vr(V_GRAM,4)))
                if t+1<18: issue_gr(t+1)
            if len(todo)==2 and i<3:
                issue_w(todo[0], i)
                if i==2: adv_w(todo[0])
            if todo and nb==3:
                issue_w(todo[-1], mb)
                if mb==2: adv_w(todo[-1])
            for f in mine[pos:pos+per[i]]: emit_filler(f)
            pos+=per[i]
        if t==17:
            e("s_nop 7")
            for f in stats_fillers(): emit_filler(f)
    assert not fill
    e("s_nop 7")
    for f in store_fillers(2, ACC[1]): emit_filler(f)
    if dbg_time:
        stamp("stores_issued")
        e("s_waitcnt vmcnt(0)")
        stamp("end")
        e("s_waitcnt lgkmcnt(0)")
        e("s_mov_b32 s36, s4"); e("s_mov_b32 s37, s5"); e("s_mov_b32 s38, 0x%x" % WS_BYTES); e("s_mov_b32 s39, 0x20000")
        e("s_lshl_b32 s40, s2, 2"); e("s_add_u32 s40, s40, s18"); e("s_lshl_b32 s40, s40, 7"); e("s_add_u32 s40, s40, 0x4000000")
        e("v_mov_b32 v%d, 0" % (T+1))
        for i in range(len(stamps)):
            for k2 in range(2):
                e("v_mov_b32 v%d, s%d" % (T, 44+4*i+2*k2))
                e("buffer_store_dword v%d, v%d, s[36:39], s40 offen offset:%d" % (T, T+1, 8*i+4*k2))
                e("s_nop 1")
        print("stamps:", stamps)
    A.label("%s_end" % name)
    e("s_endpgm")
    kd=KD_FMT.format(name=name, vgpr=256+NAGPR, sgpr=100, accum=256)
    return A.text(), kd, LDS_RSTD+256

def gen_k5(name="k5_kernel"):
    A=Asm(); e=A.e
    A.raw(".globl %s\n.p2align 8\n.type %s,@function\n%s:" % (name,name,name))
    e("s_cmp_ge_u32 s2, 576")
    e("s_cbranch_scc1 %s_end" % name)
    e("s_load_dwordx2 s[4:5], s[0:1], 80")
    e("s_load_dwordx2 s[6:7], s[0:1], 56")
    e("s_load_dwordx2 s[12:13], s[0:1], 64")
    e("v_and_b32 v1, 63, v0")
    e("v_lshrrev_b32 v2, 6, v0")
    e("s_lshl_b32 s3, s2, 2")
    e("v_readfirstlane_b32 s16, v2")
    e("s_nop 3")
    e("s_add_u32 s16, s16, s3")
    e("s_mul_hi_u32 s17, s16, 0x2aaaaaab")
    e("s_mul_i32 s18, s17, 6"); e("s_sub_u32 s18, s16, s18")
    e("s_mul_hi_u32 s19, s17, 0x55555556")
    e("s_mul_i32 s20, s19, 3"); e("s_sub_u32 s20, s17, s20")
    e("s_and_b32 s21, s19, 3")
    e("s_lshr_b32 s22, s19, 2")
    e("s_lshr_b32 s23, s18, 1")
    e("s_and_b32 s24, s18, 1"); e("s_lshl_b32 s24, s24, 1")
    e("s_mul_i32 s25, s21, 144"); e("s_mul_i32 s26, s20, 48"); e("s_add_u32 s25, s25, s26")
    e("s_lshl_b32 s26, s23, 4"); e("s_add_u32 s25, s25, s26")
    e("s_lshl_b32 s26, s22, 6"); e("s_lshl_b32 s27, s24, 4"); e("s_add_u32 s26, s26, s27")
    e("v_and_b32 v3, 15, v1"); e("v_lshrrev_b32 v4, 4, v1")
    e("v_add_u32 v3, s26, v3")
    e("v_lshlrev_b32 v4, 2, v4"); e("v_add_u32 v4, s25, v4")
    e("s_movk_i32 s27, 1152")
    e("v_mul_lo_u32 v5, v3, s27")
    e("v_lshl_add_u32 v5, v4, 1, v5")
    e("v_lshlrev_b32 v6, 2, v3")
    e("v_lshlrev_b32 v7, 1, v4")
    e("v_lshlrev_b32 v8, 4, v1")
    e("s_waitcnt lgkmcnt(0)")
    e("s_mov_b32 s8, s4"); e("s_mov_b32 s9, s5"); e("s_mov_b32 s10, 0x%x" % WS_BYTES); e("s_mov_b32 s11, 0x20000")
    e("s_mov_b32 s28, s6"); e("s_mov_b32 s29, s7"); e("s_mov_b32 s30, 1152"); e("s_mov_b32 s31, 0x20000")
    e("s_mov_b32 s32, s12"); e("s_mov_b32 s33, s13"); e("s_mov_b32 s34, %d" % (S*D*2)); e("s_mov_b32 s35, 0x20000")
    e("s_lshl_b32 s36, s16, 10"); e("s_add_u32 s36, s36, 0x%x" % OFF_PART)
    for j in range(8):
        e("buffer_load_dwordx4 %s, v8, s[8:11], s36 offen" % vr(16+4*j,4))
        if j<7: e("s_add_u32 s36, s36, %d" % (S*D*2))
    e("s_mov_b32 s37, 0x%x" % OFF_HC)
    e("buffer_load_dwordx2 v[48:49], v5, s[8:11], s37 offen")
    e("s_add_u32 s38, s37, %d" % (16*1152))
    e("buffer_load_dwordx2 v[50:51], v5, s[8:11], s38 offen")
    e("s_mov_b32 s39, 0x%x" % OFF_MEAN)
    e("buffer_load_dword v52, v6, s[8:11], s39 offen")
    e("buffer_load_dword v53, v6, s[8:11], s39 offen offset:64")
    e("buffer_load_dwordx2 v[54:55], v7, s[28:31], 0 offen")
    e("s_waitcnt vmcnt(0)")
    for tt in range(2):
        for dw in range(2):
            o=60+tt*4+dw*2
            e("v_lshlrev_b32 v%d, 16, v%d" % (o, 48+tt*2+dw))
            e("v_and_b32 v%d, 0xffff0000, v%d" % (o+1, 48+tt*2+dw))
            e("v_add_f32 v%d, v%d, v%d" % (o, o, 52+tt))
            e("v_add_f32 v%d, v%d, v%d" % (o+1, o+1, 52+tt))
    for i in range(4):
        e("v_lshlrev_b32 v%d, 16, v%d" % (70+2*i, 54+(i&1)))
        e("v_and_b32 v%d, 0xffff0000, v%d" % (71+2*i, 54+(i&1)))
    for j in range(8):
        for i in range(4):
            e("v_lshlrev_b32 v80, 16, v%d" % (16+4*j+i))
            e("v_and_b32 v81, 0xffff0000, v%d" % (16+4*j+i))
            e("v_add_f32 v%d, v%d, v80" % (70+2*i, 70+2*i))
            e("v_add_f32 v%d, v%d, v81" % (71+2*i, 71+2*i))
    for i in range(8):
        e("v_add_f32 v%d, v%d, v%d" % (70+i, 70+i, 60+i))
    for i in range(4):
        e("v_cvt_pk_bf16_f32 v%d, v%d, v%d" % (84+i, 70+2*i, 71+2*i))
    e("buffer_store_dwordx2 v[84:85], v5, s[32:35], 0 offen")
    e("s_movk_i32 s40, %d" % (16*1152))
    e("buffer_store_dwordx2 v[86:87], v5, s[32:35], s40 offen")
    A.label("%s_end" % name)
    e("s_endpgm")
    kd=KD_FMT.format(name=name, vgpr=96, sgpr=48, accum=96)
    return A.text(), kd, 0

if __name__=="__main__":
    import sys
    opts=eval("dict(%s)" % (sys.argv[2] if len(sys.argv)>2 else ""))
    t4,kd4,lds4=gen_k4(dbg_time=True, **opts)
    t5,kd5,lds5=gen_k5()
    hdr="; @launch kernel=k4_kernel grid=(256,1,1) block=(256,1,1) lds=%d\n; @launch kernel=k5_kernel grid=(576,1,1) block=(256,1,1) lds=0\n" % lds4
    s=hdr+'.amdgcn_target "amdgcn-amd-amdhsa--gfx950"\n.text\n'+t4+t5+'.section .rodata,"a"\n'+kd4+kd5
    open(sys.argv[1],"w").write(s)
```

```python
from asmlib import *
from layout import *
import math

def gen_k4(name="k4_kernel", P=5, P0=2, store_flags="", dbg_time=False, warm=True, gelu_end=89, gelu_start=18, stage=True):
    A=Asm(); e=A.e
    V_LANE=1; V_L16=2
    V_AE,V_AO,V_AE8,V_AO8,V_HE,V_HO,V_HE8,V_HO8 = 3,4,5,6,7,8,9,10
    V_WA=11; V_GE,V_GO,V_GE8,V_GO8 = 14,15,16,17
    V_RSTD=18; V_BIAS=22; V_BRAW=34; V_C1=52; V_C2=53
    V_X=54; V_T=58; V_PK=62; V_GRAM=68; V_ST=72
    ACC=[80,128,176]
    T=224
    A_RING=0; A_ACT=12*P; A_GR=A_ACT+32; A_DUMMY=A_GR+8; A_D=A_DUMMY+4
    A_D=(A_D+3)//4*4
    NAGPR=A_D+144
    assert NAGPR<=256, NAGPR
    LDS_H=73728; LDS_RSTD=147456
    vm=VQ("vm",63); lg=VQ("lgkm",15)
    stamps=[]
    def stamp(nm):
        if not dbg_time: return
        i=len(stamps); stamps.append(nm)
        A.e("s_memtime s[%d:%d]" % (44+4*i,45+4*i)); A.e("s_memrealtime s[%d:%d]" % (46+4*i,47+4*i))
    A.raw(".globl %s\n.p2align 8\n.type %s,@function\n%s:" % (name,name,name))
    e("s_cmp_ge_u32 s2, 256")
    e("s_cbranch_scc1 %s_end" % name)
    e("s_load_dwordx2 s[4:5], s[0:1], 80")
    e("s_load_dwordx2 s[6:7], s[0:1], 40")
    stamp("start")
    e("v_and_b32 v%d, 63, v0" % V_LANE)
    e("v_lshrrev_b32 v%d, 6, v0" % T)
    e("s_and_b32 s16, s2, 7")
    e("s_lshr_b32 s17, s2, 3")
    e("v_readfirstlane_b32 s18, v%d" % T)
    e("v_lshlrev_b32 v%d, 4, v%d" % (V_L16, V_LANE))
    e("v_lshrrev_b32 v%d, 4, v%d" % (T+2, V_LANE))
    e("v_lshrrev_b32 v%d, 3, v%d" % (T+9, V_LANE))
    e("s_lshl_b32 s19, s18, 4")
    e("v_add_u32 v%d, s19, v%d" % (T+9, T+9))
    e("s_movk_i32 s23, 1152")
    e("v_mul_lo_u32 v%d, v%d, s23" % (T+9, T+9))
    e("v_and_b32 v%d, 7, v%d" % (T+10, V_LANE))
    e("v_xor_b32 v%d, v%d, v%d" % (T+11, T+10, T+2))
    e("v_xor_b32 v%d, 4, v%d" % (T+12, T+11))
    e("v_lshl_add_u32 v%d, v%d, 4, v%d" % (T+11, T+11, T+9))
    e("v_lshl_add_u32 v%d, v%d, 4, v%d" % (T+12, T+12, T+9))
    e("v_add_u32 v%d, %d, v%d" % (T+12, 8*1152, T+12))
    e("s_mul_i32 s23, s17, %d" % (64*1152))
    e("s_add_u32 s23, s23, 0x%x" % OFF_HC)
    e("s_lshl_b32 s24, s18, 11")
    e("s_lshl_b32 s25, s16, 2"); e("s_add_u32 s25, s25, s18"); e("s_mul_i32 s25, s25, 165888")
    e("s_add_u32 s20, s25, 0x%x" % OFF_W1S)
    e("s_add_u32 s21, s25, 0x%x" % OFF_W2S)
    e("s_waitcnt lgkmcnt(0)")
    stamp("karg")
    e("s_mov_b32 s8, s4"); e("s_mov_b32 s9, s5"); e("s_mov_b32 s10, 0x%x" % WS_BYTES); e("s_mov_b32 s11, 0x20000")
    dma_ids={}
    def dma(cb,g):
        L=["s_add_u32 m0, s24, %d" % (cb*8192 + g*1024),
           ("s_add_u32 s23, s23, 128" if (g==0 and cb>0) else "s_nop 0"),
           ("vmid", "buffer_load_dwordx4 v%d, s[8:11], s23 offen lds" % (T+11+g), dma_ids, (cb,g))]
        return L
    def emit_filler(f):
        if isinstance(f,str): e(f)
        elif f[0]=="call":
            s=f[1]()
            if s: e(s)
        elif f[0]=="lds": e(f[1]); lg.issue()
        elif f[0]=="vm": e(f[1]); vm.issue()
        elif f[0]=="vmid": e(f[1]); f[2][f[3]]=vm.issue()
        elif f[0]=="grp":
            for g in f[1]: emit_filler(g)
    ncb0 = 3 if stage else 9
    for cb in range(ncb0):
        for g in range(2):
            for f in dma(cb,g): emit_filler(f)
    ring_ids={}
    def issue_w(t, mb):
        r=A_RING+(t%P)*12+mb*4
        e("buffer_load_dwordx4 %s, v%d, s[8:11], s20 offen offset:%d" % (ar(r,4), V_L16, mb*1024))
        ring_ids[(t,mb)]=vm.issue()
    def adv_w(t):
        if t+1==54: e("s_mov_b32 s20, s21")
        else: e("s_add_u32 s20, s20, 3072")
    for t in range(P0):
        for mb in range(3): issue_w(t,mb)
        adv_w(t)
    nxt=[P0]
    stamp("issued")
    e("s_mov_b32 s12, s6"); e("s_mov_b32 s13, s7"); e("s_mov_b32 s14, %d" % (F*2)); e("s_mov_b32 s15, 0x20000")
    e("v_and_b32 v%d, 15, v%d" % (T+1, V_LANE))
    e("v_lshrrev_b32 v%d, 1, v%d" % (T+3, T+1))
    e("v_xor_b32 v%d, v%d, v%d" % (T+4, T+2, T+3))
    e("v_lshlrev_b32 v%d, 4, v%d" % (T+4, T+4))
    e("v_lshl_add_u32 v%d, v%d, 7, v%d" % (V_AE, T+1, T+4))
    e("v_xor_b32 v%d, 64, v%d" % (V_AO, V_AE))
    e("v_add_u32 v%d, 0x10000, v%d" % (V_AE8, V_AE))
    e("v_add_u32 v%d, 0x10000, v%d" % (V_AO8, V_AO))
    e("v_add_u32 v%d, %d, v%d" % (V_HE, LDS_H, V_AE))
    e("v_add_u32 v%d, %d, v%d" % (V_HO, LDS_H, V_AO))
    e("v_add_u32 v%d, %d, v%d" % (V_HE8, LDS_H+0x10000, V_AE))
    e("v_add_u32 v%d, %d, v%d" % (V_HO8, LDS_H+0x10000, V_AO))
    e("v_add_u32 v%d, s24, v%d" % (V_GE, V_AE))
    e("v_add_u32 v%d, s24, v%d" % (V_GO, V_AO))
    e("v_add_u32 v%d, s24, v%d" % (V_GE8, V_AE8))
    e("v_add_u32 v%d, s24, v%d" % (V_GO8, V_AO8))
    e("s_mul_i32 s19, s18, 6")
    e("v_lshrrev_b32 v%d, 1, v%d" % (T+5, T+2))
    e("v_add_u32 v%d, s19, v%d" % (T+5, T+5))
    e("v_and_b32 v%d, 1, v%d" % (T+6, T+2))
    e("v_lshlrev_b32 v%d, 3, v%d" % (T+6, T+6))
    e("v_lshl_add_u32 v%d, v%d, 7, v%d" % (T+6, T+1, T+6))
    e("v_add_u32 v%d, %d, v%d" % (T+6, LDS_H, T+6))
    for mb in range(3):
        e("v_add_u32 v%d, %d, v%d" % (T+7, 2*mb, T+5))
        e("v_lshrrev_b32 v%d, 3, v%d" % (T+8, T+7))
        e("v_and_b32 v%d, 7, v%d" % (T+7, T+7))
        e("v_xor_b32 v%d, v%d, v%d" % (T+7, T+7, T+3))
        e("v_lshlrev_b32 v%d, 4, v%d" % (T+7, T+7))
        e("v_lshl_add_u32 v%d, v%d, 13, v%d" % (T+7, T+8, T+7))
        e("v_add_u32 v%d, v%d, v%d" % (V_WA+mb, T+7, T+6))
    c1 = 2.0*math.sqrt(2.0/math.pi)*math.log2(math.e); c2 = c1*0.044715
    e("v_mov_b32 v%d, %s" % (V_C1, fhex(-c1)))
    e("v_mov_b32 v%d, %s" % (V_C2, fhex(-c2)))
    e("s_lshl_b32 s25, s16, 5"); e("s_add_u32 s25, s25, s17"); e("s_lshl_b32 s25, s25, 2"); e("s_add_u32 s25, s25, s18")
    e("s_mul_i32 s25, s25, 18432")
    e("s_add_u32 s22, s25, 0x%x" % OFF_PART)
    e("v_lshlrev_b32 v%d, 3, v%d" % (T+13, T+2))
    e("s_mul_i32 s25, s16, 1152"); e("s_mul_i32 s26, s18, 288"); e("s_add_u32 s30, s25, s26")
    extra={t:[] for t in range(108)}
    if stage:
        for cb in range(3,9):
            st=cb-3
            for g in range(2): extra[st].append(("grp", dma(cb,g)))
    bias_ids={}
    for c in range(3):
        for mb in range(3):
            extra[6+c].append(("vmid","buffer_load_dwordx2 %s, v%d, s[12:15], s30 offen offset:%d" % (vr(V_BRAW+(c*3+mb)*2,2), T+13, c*96+mb*32), bias_ids,(c,mb)))
    if warm:
        L=["s_lshl_b32 s26, s18, 6", "v_add_u32 v%d, s26, v%d" % (T+14, V_LANE), "v_min_u32 v%d, 161, v%d" % (T+14, T+14),
           "v_lshlrev_b32 v%d, 7, v%d" % (T+14, T+14), "s_mul_i32 s25, s16, 663552", "s_mul_i32 s26, s17, 20736", "s_add_u32 s25, s25, s26",
           "s_add_u32 s27, s25, 0x%x" % OFF_W2S, ("vm","buffer_load_dword a%d, v%d, s[8:11], s27 offen" % (A_DUMMY+1, T+14))]
        extra[9]+=L
    e(waitcnt(vm=vm.need(dma_ids[(ncb0-1,1)])))
    stamp("dma_done")
    e("s_barrier")
    act_ids={}
    def step_info(t):
        if t<54: return ("g1", t%18, ACC[t//18], t%18==0, False)
        u=t-54; kap=u//18; cc=(u%18)//6; ksl=u%6
        return ("g2", 6*kap+ksl, A_D+cc*48, kap==0 and ksl==0, True)
    def issue_act(t, nb):
        kind,ks,_,_,_=step_info(t)
        cb=ks>>1; odd=ks&1
        regs=(V_AE,V_AO,V_AE8,V_AO8) if kind=="g1" else (V_HE,V_HO,V_HE8,V_HO8)
        v,off=(regs[odd], cb*8192+nb*2048) if cb<8 else (regs[2+odd], nb*2048)
        e("ds_read_b128 %s, v%d offset:%d" % (ar(A_ACT+(t&1)*16+nb*4,4), v, off))
        act_ids[(t,nb)]=lg.issue()
    gr_ids={}
    def issue_gr(t):
        cb=t>>1; odd=t&1
        v,off=((V_GE,V_GO)[odd], cb*8192) if cb<8 else ((V_GE8,V_GO8)[odd], 0)
        e("ds_read_b128 %s, v%d offset:%d" % (ar(A_GR+(t&1)*4,4), v, off))
        gr_ids[t]=lg.issue()
    for nb in range(4): issue_act(0,nb)
    issue_gr(0)

    def gelu_fillers(c, acc):
        L=[("call", lambda c=c: waitcnt(vm=vm.need(bias_ids[(c,2)])))]
        for mb in range(3):
            raw=V_BRAW+(c*3+mb)*2; b=V_BIAS+mb*4
            L+=["v_lshlrev_b32 v%d, 16, v%d" % (b+0, raw), "v_and_b32 v%d, 0xffff0000, v%d" % (b+1, raw),
                "v_lshlrev_b32 v%d, 16, v%d" % (b+2, raw+1), "v_and_b32 v%d, 0xffff0000, v%d" % (b+3, raw+1)]
        k=0
        for mb in range(3):
            for nb in range(4):
                a=acc+(mb*4+nb)*4; b=V_BIAS+mb*4; pkr=V_PK+(k&1)*2; k+=1
                for r in range(4): L.append("v_fma_f32 v%d, v%d, v%d, v%d" % (V_X+r, a+r, V_RSTD+nb, b+r))
                for r in range(4): L.append("v_mul_f32 v%d, v%d, v%d" % (V_T+r, V_X+r, V_X+r))
                for r in range(4): L.append("v_fma_f32 v%d, v%d, v%d, v%d" % (V_T+r, V_T+r, V_C2, V_C1))
                for r in range(4): L.append("v_mul_f32 v%d, v%d, v%d" % (V_T+r, V_X+r, V_T+r))
                for r in range(4): L.append("v_exp_f32 v%d, v%d" % (V_T+r, V_T+r))
                for r in range(4): L.append("v_add_f32 v%d, 1.0, v%d" % (V_T+r, V_T+r))
                for r in range(4): L.append("v_rcp_f32 v%d, v%d" % (V_T+r, V_T+r))
                for r in range(4): L.append("v_mul_f32 v%d, v%d, v%d" % (V_X+r, V_X+r, V_T+r))
                L.append("v_cvt_pk_bf16_f32 v%d, v%d, v%d" % (pkr, V_X, V_X+1))
                L.append("v_cvt_pk_bf16_f32 v%d, v%d, v%d" % (pkr+1, V_X+2, V_X+3))
                L.append(("lds", "ds_write_b64 v%d, %s offset:%d" % (V_WA+mb, vr(pkr,2), c*24576+nb*2048)))
        return L
    def store_fillers(cc):
        L=[]
        acc=A_D+cc*48
        for jj in range(6):
            st=V_ST+(jj&1)*4
            for tt in range(2):
                a=acc+(2*jj+tt)*4
                for r in range(4): L.append("v_accvgpr_read_b32 v%d, a%d" % (V_X+tt*4+r, a+r))
            for tt in range(2):
                L.append("v_cvt_pk_bf16_f32 v%d, v%d, v%d" % (st+2*tt, V_X+tt*4, V_X+tt*4+1))
                L.append("v_cvt_pk_bf16_f32 v%d, v%d, v%d" % (st+2*tt+1, V_X+tt*4+2, V_X+tt*4+3))
            L.append(("vm", "buffer_store_dwordx4 %s, v%d, s[8:11], s22 offen %s" % (vr(st,4), V_L16, store_flags)))
            L.append("s_add_u32 s22, s22, 1024")
        return L
    def stats_fillers():
        L=[]; g=V_GRAM
        L+=["v_and_b32 v%d, 3, v%d" % (T+20, V_LANE), "v_cmp_eq_u32 vcc, 1, v%d" % (T+20), "s_nop 1",
            "v_cndmask_b32 v%d, v%d, v%d, vcc" % (T+21, g, g+1), "v_cmp_eq_u32 vcc, 2, v%d" % (T+20), "s_nop 1",
            "v_cndmask_b32 v%d, v%d, v%d, vcc" % (T+21, T+21, g+2), "v_cmp_eq_u32 vcc, 3, v%d" % (T+20), "s_nop 1",
            "v_cndmask_b32 v%d, v%d, v%d, vcc" % (T+21, T+21, g+3),
            "v_mov_b32 v%d, %s" % (T+22, fhex(1e-5)), "v_fmac_f32 v%d, %s, v%d" % (T+22, fhex(1.0/576.0), T+21),
            "v_rsq_f32 v%d, v%d" % (T+22, T+22), "v_lshrrev_b32 v%d, 2, v%d" % (T+23, T+1), "s_lshl_b32 s19, s18, 6",
            "v_lshlrev_b32 v%d, 2, v%d" % (T+24, T+1), "v_add_u32 v%d, s19, v%d" % (T+24, T+24),
            "v_add_u32 v%d, %d, v%d" % (T+24, LDS_RSTD, T+24), "v_cmp_eq_u32 vcc, v%d, v%d" % (T+23, T+2),
            "s_and_saveexec_b64 s[28:29], vcc", ("lds", "ds_write_b32 v%d, v%d" % (T+24, T+22)), "s_mov_b64 exec, s[28:29]"]
        return L

    gq=gelu_fillers(0,ACC[0])+gelu_fillers(1,ACC[1])+gelu_fillers(2,ACC[2])
    ng=len(gq); glen=ng//3
    gpos=0
    sq=[]
    rstd_id=None
    for t in range(108):
        kind,ks,acc,first,isA=step_info(t)
        if t%18==0: stamp("ph%d" % (t//18))
        bar = t in ((5,11,18,53,71,89) if stage else (18,53,71,89))
        nv=vm.need(ring_ids[(t,2)])
        if stage and t in (5,11):
            cb=5 if t==5 else 8
            n2=vm.need(dma_ids[(cb,1)])
            if n2 is not None: nv = n2 if nv is None else min(nv,n2)
        if bar: lg.drain(); nl=0
        else:
            last=act_ids[(t,3)]
            if t<18: last=max(last, gr_ids[t])
            nl=lg.need(last)
        w=waitcnt(vm=nv, lgkm=nl)
        if w: e(w)
        if bar: e("s_barrier")
        if t==18:
            e("v_lshlrev_b32 v%d, 2, v%d" % (T+25, T+1))
            e("v_add_u32 v%d, %d, v%d" % (T+25, LDS_RSTD, T+25))
            for nb in range(4):
                e("ds_read_b32 v%d, v%d offset:%d" % (V_RSTD+nb, T+25, nb*64)); rstd_id=lg.issue()
        mine=list(extra[t])
        if gelu_start<=t<gelu_end:
            target=ng*(t-gelu_start+1)//(gelu_end-gelu_start)
            lim = glen*min(3,(t//18))
            target=min(target,lim)
            g=gq[gpos:target]
            if t==gelu_start:
                g=g[:13]+[("call", lambda: waitcnt(lgkm=lg.need(rstd_id)))]+g[13:]
                assert len(g)>14
            mine+=g; gpos=max(gpos,target)
        if t in (96,102): sq=store_fillers(0 if t==96 else 1)
        if sq:
            left = (102-t) if t<102 else (108-t)
            n=-(-len(sq)//left); mine+=sq[:n]; sq=sq[n:]
        per=[len(mine)*(i+1)//12 - len(mine)*i//12 for i in range(12)]
        pos=0
        todo=[n for n in range(nxt[0], min(t+P,107)+1)][:2]
        nxt[0]+=len(todo)
        for i in range(12):
            mb=i//4; nb=i%4
            wreg=ar(A_RING+(t%P)*12+mb*4,4); areg=ar(A_ACT+(t&1)*16+nb*4,4)
            d=ar(acc+i*4,4) if isA else vr(acc+i*4,4)
            e("v_mfma_f32_16x16x32_bf16 %s, %s, %s, %s" % (d, wreg, areg, "0" if first else d))
            if i<4 and t+1<108: issue_act(t+1,i)
            if i==4 and t<18:
                g=ar(A_GR+(t&1)*4,4)
                e("v_mfma_f32_16x16x32_bf16 %s, %s, %s, %s" % (vr(V_GRAM,4), g, g, "0" if t==0 else vr(V_GRAM,4)))
                if t+1<18: issue_gr(t+1)
            if len(todo)==2 and i<3:
                issue_w(todo[0], i)
                if i==2: adv_w(todo[0])
            if todo and nb==3:
                issue_w(todo[-1], mb)
                if mb==2: adv_w(todo[-1])
            for f in mine[pos:pos+per[i]]: emit_filler(f)
            pos+=per[i]
        if t==17:
            e("s_nop 7")
            for f in stats_fillers(): emit_filler(f)
    assert gpos==ng and not sq, (gpos,ng,len(sq))
    e("s_nop 7")
    for f in store_fillers(2): emit_filler(f)
    if dbg_time:
        stamp("stores_issued")
        e("s_waitcnt vmcnt(0)")
        stamp("end")
        e("s_waitcnt lgkmcnt(0)")
        e("s_mov_b32 s36, s4"); e("s_mov_b32 s37, s5"); e("s_mov_b32 s38, 0x%x" % WS_BYTES); e("s_mov_b32 s39, 0x20000")
        e("s_lshl_b32 s40, s2, 2"); e("s_add_u32 s40, s40, s18"); e("s_lshl_b32 s40, s40, 7"); e("s_add_u32 s40, s40, 0x4000000")
        e("v_mov_b32 v%d, 0" % (T+1))
        for i in range(len(stamps)):
            for k2 in range(2):
                e("v_mov_b32 v%d, s%d" % (T, 44+4*i+2*k2))
                e("buffer_store_dword v%d, v%d, s[36:39], s40 offen offset:%d" % (T, T+1, 8*i+4*k2))
                e("s_nop 1")
        print("stamps:", stamps)
    A.label("%s_end" % name)
    e("s_endpgm")
    kd=KD_FMT.format(name=name, vgpr=256+NAGPR, sgpr=100, accum=256)
    return A.text(), kd, LDS_RSTD+256, 256
```

```python
S=2048; D=576; F=4608
OFF_XP   = 0x0000000
OFF_ZP   = 0x0240000
OFF_HC   = 0x0480000
OFF_MEAN = 0x06C0000
OFF_CNT  = 0x06D0000
OFF_WT   = 0x0700000
OFF_W1S  = 0x0940000
OFF_W2S  = 0x0E50000
OFF_PART = 0x1360000
WS_BYTES = 0x10000000

G1SEQ = True
```

```python
from asmlib import *
from layout import *

def emit_swz_common(A, pitch, vbase=2):
    e=A.e
    V0,V1,VR=vbase,vbase+1,vbase+2
    t=vbase+3
    e("v_lshrrev_b32 v%d, 3, v1" % t)
    e("s_mov_b32 s40, %d" % pitch)
    e("v_mul_lo_u32 v%d, v%d, s40" % (t,t))
    e("v_bfe_u32 v%d, v1, 4, 1" % (t+1))
    e("v_lshlrev_b32 v%d, 1, v%d" % (t+1,t+1))
    e("v_and_b32 v%d, 7, v1" % (t+2))
    e("v_xor_b32 v%d, v%d, v%d" % (t+2,t+2,t+1))
    e("v_lshl_add_u32 v%d, v%d, 4, v%d" % (V0,t+2,t))
    e("v_xor_b32 v%d, 64, v%d" % (V1,V0))
    e("v_lshrrev_b32 v%d, 4, v1" % t)
    e("v_bfe_u32 v%d, v1, 2, 2" % (t+1))
    e("v_lshl_add_u32 v%d, v%d, 3, v%d" % (t+2,t,t+1))
    e("v_lshlrev_b32 v%d, 7, v%d" % (t+2,t+2))
    e("v_lshrrev_b32 v%d, 1, v%d" % (t+1,t+1))
    e("v_and_b32 v%d, 1, v%d" % (t,t))
    e("v_lshl_add_u32 v%d, v%d, 1, v%d" % (t,t,t+1))
    e("v_lshl_add_u32 v%d, v%d, 5, v%d" % (t+2,t,t+2))
    e("v_and_b32 v%d, 3, v1" % t)
    e("v_lshl_add_u32 v%d, v%d, 3, v%d" % (VR,t,t+2))
    return V0,V1,VR

def emit_swz_dma(A, V0, V1, srd, sSrc0, sSrc1, pitch, s_lds, ldsoff):
    e=A.e
    for i in range(4):
        src = sSrc0 if i<2 else sSrc1
        e("s_add_u32 m0, s%d, %d" % (s_lds, ldsoff+i*1024))
        if i&1: e("s_add_u32 s41, s%d, %d" % (src, 8*pitch))
        else: e("s_mov_b32 s41, s%d" % src)
        e("buffer_load_dwordx4 v%d, %s, s41 offen lds" % ((V0,V1)[i&1], srd))

def emit_swz_out(A, VR, s_lds, ldsoff, dests, vlane16, vt, flags=""):
    e=A.e
    for fbl in range(4):
        e("v_xor_b32 v%d, %d, v%d" % (vt+16+fbl, fbl<<5, VR))
        e("v_add_u32 v%d, s%d, v%d" % (vt+16+fbl, s_lds, vt+16+fbl))
    for fbl in range(4):
        e("ds_read_b64_tr_b16 %s, v%d offset:%d" % (vr(vt+fbl*4,2), vt+16+fbl, ldsoff))
        e("ds_read_b64_tr_b16 %s, v%d offset:%d" % (vr(vt+fbl*4+2,2), vt+16+fbl, ldsoff+512))
    for fbl in range(4):
        e("s_waitcnt lgkmcnt(%d)" % (6-2*fbl))
        e("buffer_store_dwordx4 %s, v%d, s[8:11], s%d offen %s" % (vr(vt+fbl*4,4), vlane16, dests[fbl], flags))

def emit_w1_role(A, wi_sgpr, flags=""):
    e=A.e
    V0,V1,VR=emit_swz_common(A, 9216)
    e("v_lshlrev_b32 v8, 4, v1")
    e("s_mul_hi_u32 s20, s%d, 0x%x" % (wi_sgpr, (2**32+35)//36))
    e("s_mul_i32 s21, s20, 36"); e("s_sub_u32 s21, s%d, s21" % wi_sgpr)
    e("s_lshl_b32 s19, s18, 13")
    e("s_mul_i32 s22, s20, %d" % (32*9216)); e("s_lshl_b32 s23, s21, 8"); e("s_add_u32 s22, s22, s23")
    for task in range(2):
        e("s_add_u32 s24, s22, %d" % (task*128))
        e("s_add_u32 s25, s24, %d" % (16*9216))
        emit_swz_dma(A,V0,V1,"s[12:15]",24,25,9216,19,task*4096)
    for task in range(2):
        for fbl in range(4):
            e("s_lshl_b32 s26, s21, 3"); e("s_add_u32 s26, s26, %d" % (4*task+fbl))
            e("s_mul_hi_u32 s27, s26, 0x55555556")
            e("s_mul_i32 s28, s27, 3"); e("s_sub_u32 s28, s26, s28")
            e("s_mul_i32 s27, s27, 55296"); e("s_lshl_b32 s28, s28, 10"); e("s_add_u32 s27, s27, s28")
            e("s_mul_i32 s28, s20, 3072"); e("s_add_u32 s27, s27, s28")
            e("s_add_u32 s%d, s27, 0x%x" % (30+fbl, OFF_W1S))
        e("s_waitcnt vmcnt(%d)" % (4 if task==0 else 4))
        emit_swz_out(A,VR,19,task*4096,[30,31,32,33],8,16,flags)

def w2_dest_index(j, ks, cb):
    w=cb//9; cbw=cb%9; cc=cbw//3; mb=cbw%3
    kap=ks//6; ksl=ks%6
    return (j*4+w)*162 + ((kap*3+cc)*6+ksl)*3+mb

def emit_w2_role(A, wi_sgpr, flags=""):
    e=A.e
    V0,V1,VR=emit_swz_common(A, 1152)
    e("v_lshlrev_b32 v8, 4, v1")
    e("s_mul_hi_u32 s20, s%d, 0x%x" % (wi_sgpr, (2**32+80)//81))
    e("s_mul_i32 s21, s20, 81"); e("s_sub_u32 s21, s%d, s21" % wi_sgpr)
    e("s_mul_hi_u32 s22, s21, 0x%x" % ((2**32+8)//9))
    e("s_mul_i32 s23, s22, 9"); e("s_sub_u32 s23, s21, s23")
    e("s_lshl_b32 s19, s18, 13")
    for task in range(2):
        for h in range(2):
            e("s_lshl_b32 s26, s22, 6"); e("s_add_u32 s26, s26, %d" % (32*task+16*h))
            e("s_mul_hi_u32 s27, s26, 0x%x" % ((2**32+191)//192))
            e("s_mul_i32 s28, s27, 192"); e("s_sub_u32 s28, s26, s28")
            e("s_mul_hi_u32 s29, s28, 0x%x" % ((2**32+47)//48))
            e("s_mul_i32 s34, s29, 48"); e("s_sub_u32 s28, s28, s34")
            e("s_mul_i32 s29, s29, 144"); e("s_mul_i32 s27, s27, 48")
            e("s_add_u32 s28, s28, s29"); e("s_add_u32 s28, s28, s27")
            e("s_mul_i32 s27, s20, 576"); e("s_add_u32 s28, s28, s27")
            e("s_mul_i32 s28, s28, 1152"); e("s_lshl_b32 s27, s23, 7"); e("s_add_u32 s%d, s28, s27" % (24+h))
        emit_swz_dma(A,V0,V1,"s[12:15]",24,25,1152,19,task*4096)
    for task in range(2):
        e("s_lshl_b32 s26, s22, 1"); e("s_add_u32 s26, s26, %d" % task)
        e("s_mul_hi_u32 s27, s26, 0x2aaaaaab")
        e("s_mul_i32 s28, s27, 6"); e("s_sub_u32 s28, s26, s28")
        e("s_mul_i32 s27, s27, 54"); e("s_mul_i32 s28, s28, 3"); e("s_add_u32 s35, s27, s28")
        for fbl in range(4):
            e("s_lshl_b32 s26, s23, 2"); e("s_add_u32 s26, s26, %d" % fbl)
            e("s_mul_hi_u32 s27, s26, 0x%x" % ((2**32+8)//9))
            e("s_mul_i32 s28, s27, 9"); e("s_sub_u32 s28, s26, s28")
            e("s_mul_hi_u32 s29, s28, 0x55555556")
            e("s_mul_i32 s34, s29, 3"); e("s_sub_u32 s28, s28, s34")
            e("s_mul_i32 s29, s29, 18"); e("s_add_u32 s28, s28, s29"); e("s_add_u32 s28, s28, s35")
            e("s_lshl_b32 s29, s20, 2"); e("s_add_u32 s27, s27, s29"); e("s_mul_i32 s27, s27, 162")
            e("s_add_u32 s27, s27, s28"); e("s_lshl_b32 s27, s27, 10")
            e("s_add_u32 s%d, s27, 0x%x" % (30+fbl, OFF_W2S))
        e("s_waitcnt vmcnt(4)")
        emit_swz_out(A,VR,19,task*4096,[30,31,32,33],8,16,flags)
```

```python
import sys
sys.path.insert(0,"gen")
from k1 import gen_k1
from k2 import gen_k2
from k3 import gen_k3
from k4b import gen_k4
from k4 import gen_k5
HEADER=open("sequential_preLN__spectral_gfnet__dense_activation_gelu__prompt.s.ref").read().split("; Override")[0]
def build(path, k4opts=None, which=("k1","k2","k3","k4","k5"), k1opts=None,k2opts=None,k3opts=None):
    parts=[]
    if "k1" in which: parts.append(("k1_kernel",)+gen_k1(**(k1opts or {})))
    if "k2" in which: parts.append(("k2_kernel",)+gen_k2(**(k2opts or {})))
    if "k3" in which: parts.append(("k3_kernel",)+gen_k3(**(k3opts or {})))
    if "k4" in which: parts.append(("k4_kernel",)+gen_k4(**(k4opts or {})))
    if "k5" in which:
        t,kd,l=gen_k5(); parts.append(("k5_kernel",t,kd,l,576))
    hdr=HEADER+"".join("; @launch kernel=%s grid=(%d,1,1) block=(256,1,1) lds=%d\n" % (n,g,l) for n,t,kd,l,g in parts)
    s=hdr+'.amdgcn_target "amdgcn-amd-amdhsa--gfx950"\n.text\n'+"".join(p[1] for p in parts)+'.section .rodata,"a"\n'+"".join(p[2] for p in parts)
    open(path,"w").write(s)
if __name__=="__main__":
    opts=eval("dict(%s)" % (sys.argv[2] if len(sys.argv)>2 else ""))
    build(sys.argv[1], **opts)
```

```python
from asmlib import *
from layout import *
from swz import *
import math

NT_WT = 64
NSW = 162

def gen_k1(name="k1_kernel", prefetch=True, flags="", first="k2_kernel", last="text_end", swzflags="sc1", w1=True, wtouch=False, prio=False):
    A=Asm(); e=A.e
    A.raw(".globl %s\n.p2align 8\n.type %s,@function\n%s:" % (name,name,name))
    nsw=NSW if w1 else 0
    e("s_cmp_ge_u32 s2, %d" % (256+NT_WT+nsw))
    e("s_cbranch_scc1 %s_end" % name)
    e(";@S start")
    e("s_load_dwordx2 s[4:5], s[0:1], 80")
    e("s_load_dwordx2 s[6:7], s[0:1], 0")
    e("s_load_dwordx4 s[36:39], s[0:1], 8")
    e("s_load_dwordx2 s[44:45], s[0:1], 32")
    e("s_load_dwordx2 s[46:47], s[0:1], 48")
    e("v_and_b32 v1, 63, v0")
    if prefetch:
        e("s_getpc_b64 s[40:41]")
        A.label("%s_pc0" % name)
        e("s_sub_u32 s40, s40, %s_pc0 - %s" % (name,name)); e("s_subb_u32 s41, s41, 0")
        e("v_lshlrev_b32 v213, 7, v1")
        e("global_load_dword v212, v213, s[40:41]")
        e("v_add_u32 v213, 0x2000, v213")
        e("global_load_dword v212, v213, s[40:41]")
    e("v_lshrrev_b32 v2, 6, v0")
    e("s_nop 0")
    e("v_readfirstlane_b32 s18, v2")
    e("s_cmp_ge_u32 s2, 256")
    e("s_cbranch_scc1 %s_wt" % name)
    if prio: e("s_setprio 3")
    LDS_ST=36864
    V_L15=2; V_Q=3; V_BE=4; V_BO=5; V_DMA=6
    V_SG=7; V_DL=10; V_B0=13; V_T2=16; V_SO=19
    ACC=24
    BF=72
    AF=180
    e("s_and_b32 s16, s2, 7")
    e("s_lshr_b32 s17, s2, 3")
    e("s_and_b32 s19, s17, 3")
    e("s_lshr_b32 s17, s17, 2"); e("s_lshl_b32 s17, s17, 3"); e("s_add_u32 s17, s17, s16")
    e("v_and_b32 v%d, 15, v1" % V_L15)
    e("v_lshrrev_b32 v%d, 4, v1" % V_Q)
    e("v_lshrrev_b32 v22, 1, v%d" % V_L15)
    e("v_xor_b32 v22, v%d, v22" % V_Q)
    e("v_lshlrev_b32 v22, 4, v22")
    e("v_lshl_add_u32 v%d, v%d, 7, v22" % (V_BE, V_L15))
    e("v_xor_b32 v%d, 64, v%d" % (V_BO, V_BE))
    e("v_lshrrev_b32 v22, 3, v1")
    e("s_lshl_b32 s20, s18, 3")
    e("v_add_u32 v22, s20, v22")
    e("s_movk_i32 s21, 1152")
    e("v_mul_lo_u32 v22, v22, s21")
    e("s_lshl_b32 s20, s18, 2")
    e("v_add_u32 v23, s20, v%d" % V_Q)
    e("v_and_b32 v23, 7, v23")
    e("v_and_b32 v%d, 7, v1" % V_DMA)
    e("v_xor_b32 v%d, v%d, v23" % (V_DMA, V_DMA))
    e("v_lshl_add_u32 v%d, v%d, 4, v22" % (V_DMA, V_DMA))
    e("s_waitcnt lgkmcnt(0)")
    e(";@S karg")
    e("s_mov_b32 s8, s4"); e("s_mov_b32 s9, s5"); e("s_mov_b32 s10, 0x%x" % WS_BYTES); e("s_mov_b32 s11, 0x20000")
    e("s_mov_b32 s12, s6"); e("s_mov_b32 s13, s7"); e("s_mov_b32 s14, %d" % (S*D*2)); e("s_mov_b32 s15, 0x20000")
    e("s_mul_i32 s23, s17, %d" % (32*1152))
    e("s_lshl_b32 s24, s18, 10")
    for cb in range(9):
        e("s_add_u32 m0, s24, %d" % (cb*4096))
        if cb>0: e("s_add_u32 s23, s23, 128")
        else: e("s_nop 0")
        e("buffer_load_dwordx4 v%d, s[12:15], s23 offen lds" % V_DMA)
    e("s_cmp_eq_u32 s18, 3")
    e("s_cbranch_scc1 %s_stats" % name)
    e("s_mul_i32 s20, s19, 144"); e("s_mul_i32 s21, s18, 48"); e("s_add_u32 s20, s20, s21")
    for nb in range(3):
        c="v22"; k="v23"
        e("v_add_u32 v22, s20, v%d" % V_L15)
        if nb: e("v_add_u32 v22, %d, v22" % (16*nb))
        e("v_lshlrev_b32 v%d, 12, v22" % (V_SO+nb))
        e("v_lshrrev_b32 v23, 1, v22")
        e("v_and_b32 v22, 1, v22")
        e("v_and_b32 v%d, 1, v23" % (V_SG+nb))
        e("v_lshlrev_b32 v%d, 31, v%d" % (V_SG+nb, V_SG+nb))
        e("v_or_b32 v%d, 1.0, v%d" % (V_SG+nb, V_SG+nb))
        e("v_cmp_eq_u32 vcc, 0, v23")
        e("v_mov_b32 v%d, 0x120" % (V_DL+nb))
        e("v_cvt_f32_u32 v22, v22")
        e("v_cndmask_b32 v23, v23, v%d, vcc" % (V_DL+nb))
        e("v_cvt_f32_u32 v23, v23")
        e("v_mul_f32 v%d, %s, v23" % (V_DL+nb, fhex(1.0/576.0)))
        e("v_cvt_f32_u32 v23, v%d" % V_Q)
        e("v_mul_f32 v23, 8.0, v23") if False else e("v_mul_f32 v23, %s, v23" % fhex(8.0))
        e("v_mul_f32 v22, %s, v22" % fhex(0.25))
        e("v_fma_f32 v%d, v%d, v23, v22" % (V_B0+nb, V_DL+nb))
        e("v_mul_f32 v22, %s, v%d" % (fhex(32.0), V_DL+nb))
        e("v_fract_f32 v22, v22")
        e("v_cos_f32 v22, v22")
        e("s_nop 0")
        e("v_add_f32 v%d, v22, v22" % (V_T2+nb))
    e("s_lshl_b32 s21, s17, 6")
    e("v_lshlrev_b32 v22, 3, v%d" % V_Q)
    e("v_add_u32 v22, s21, v22")
    for nb in range(3): e("v_add_u32 v%d, v%d, v22" % (V_SO+nb, V_SO+nb))
    G=[ACC, ACC+24]
    def pack(ks, g):
        for nb in range(3):
            for j in range(4):
                e("v_cvt_pk_bf16_f32 v%d, v%d, v%d" % (BF+(ks*3+nb)*4+j, g+nb*8+2*j, g+nb*8+2*j+1))
    for ks in range(2):
        g=G[ks]
        for nb in range(3):
            for i in range(8):
                cst=32*ks+i
                if cst==0: e("v_cos_f32 v%d, v%d" % (g+nb*8+i, V_B0+nb))
                else:
                    e("v_fmamk_f32 v%d, v%d, %s, v%d" % (g+nb*8+i, V_DL+nb, fhex(float(cst)), V_B0+nb))
            for i in range(8):
                cst=32*ks+i
                if cst: e("v_cos_f32 v%d, v%d" % (g+nb*8+i, g+nb*8+i))
        e("s_nop 0")
        pack(ks,g)
    for ks in range(2,9):
        g=G[ks&1]; gp=G[(ks-1)&1]
        for nb in range(3):
            for i in range(8):
                e("v_fma_f32 v%d, v%d, v%d, -v%d" % (g+nb*8+i, V_T2+nb, gp+nb*8+i, g+nb*8+i))
        pack(ks,g)
    e("s_waitcnt vmcnt(0)")
    e(";@S x_arr")
    e("s_barrier")
    def rdA(ks, buf):
        for half in range(2):
            kk=ks+9*half
            for mb in range(2):
                v=V_BO if kk&1 else V_BE
                e("ds_read_b128 %s, v%d offset:%d" % (vr(AF+buf*16+(half*2+mb)*4,4), v, (kk>>1)*4096+mb*2048))
    rdA(0,0)
    for ks in range(9):
        if ks<8:
            rdA(ks+1,(ks+1)&1); e("s_waitcnt lgkmcnt(4)")
        else: e("s_waitcnt lgkmcnt(0)")
        for half in range(2):
            for mb in range(2):
                for nb in range(3):
                    d=vr(ACC+half*24+(mb*3+nb)*4,4)
                    e("v_mfma_f32_16x16x32_bf16 %s, %s, %s, %s" % (d, vr(AF+(ks&1)*16+(half*2+mb)*4,4), vr(BF+(ks*3+nb)*4,4), "0" if ks==0 else d))
    e("s_barrier")
    e("v_lshlrev_b32 v22, 4, v%d" % V_Q)
    e("v_add_u32 v22, %d, v22" % LDS_ST)
    e("ds_read_b128 v[180:183], v22")
    e("ds_read_b128 v[184:187], v22 offset:64")
    e("s_mov_b32 s25, 0x%x" % OFF_XP)
    e("s_nop 4")
    e("s_waitcnt lgkmcnt(0)")
    for mb in range(2):
        for nb in range(3):
            lo=ACC+(mb*3+nb)*4; hi=lo+24
            for r in range(4): e("v_fma_f32 v%d, v%d, v%d, v%d" % (lo+r, hi+r, V_SG+nb, lo+r))
            for r in range(4): e("v_mul_f32 v%d, v%d, v%d" % (lo+r, lo+r, 180+mb*4+r))
            e("v_cvt_pk_bf16_f32 v%d, v%d, v%d" % (hi, lo, lo+1))
            e("v_cvt_pk_bf16_f32 v%d, v%d, v%d" % (hi+1, lo+2, lo+3))
            e("buffer_store_dwordx2 %s, v%d, s[8:11], s25 offen offset:%d %s" % (vr(hi,2), V_SO+nb, mb*32, flags))
    e("s_endpgm")
    A.label("%s_stats" % name)
    if prefetch:
        e("s_getpc_b64 s[40:41]")
        A.label("%s_pc1" % name)
        e("s_add_u32 s40, s40, %s - %s_pc1" % (first,name)); e("s_addc_u32 s41, s41, 0")
        e("s_lshr_b32 s42, s2, 3"); e("s_and_b32 s42, s42, 7"); e("s_lshl_b32 s42, s42, 13")
        e("v_lshlrev_b32 v213, 7, v1")
        e("v_add_u32 v213, s42, v213")
        e("v_min_u32 v213, %s - %s - 4, v213" % (last, first))
        e("global_load_dword v212, v213, s[40:41]")
    e("s_cmp_lg_u32 s2, 0")
    e("s_cbranch_scc1 %s_nz" % name)
    e("v_lshlrev_b32 v213, 8, v1"); e("v_min_u32 v213, %d, v213" % (31*256)); e("v_mov_b32 v214, 0")
    e("s_mov_b32 s30, 0x%x" % OFF_CNT)
    e("buffer_store_dword v214, v213, s[8:11], s30 offen")
    e("s_waitcnt vmcnt(0)")
    A.label("%s_nz" % name)
    ntouch=0
    if wtouch:
        e("s_and_b32 s16, s2, 255")
        e("s_mul_i32 s30, s16, %d" % (162*128))
        for (lo,hi) in ((44,45),(46,47)):
            e("s_mov_b32 s48, s%d" % lo); e("s_mov_b32 s49, s%d" % hi); e("s_mov_b32 s50, %d" % (D*F*2)); e("s_mov_b32 s51, 0x20000")
            e("v_lshlrev_b32 v213, 7, v1")
            e("buffer_load_dword v212, v213, s[48:51], s30 offen"); ntouch+=1
            e("v_add_u32 v213, 0x2000, v213")
            e("buffer_load_dword v212, v213, s[48:51], s30 offen"); ntouch+=1
            e("v_min_u32 v213, 33, v1"); e("v_add_u32 v213, 128, v213"); e("v_lshlrev_b32 v213, 7, v213")
            e("buffer_load_dword v212, v213, s[48:51], s30 offen"); ntouch+=1
    e("v_mov_b32 v72, 0x3f803f80"); e("v_mov_b32 v73, 0x3f803f80"); e("v_mov_b32 v74, 0x3f803f80"); e("v_mov_b32 v75, 0x3f803f80")
    e("s_waitcnt vmcnt(%d)" % (ntouch+(1 if prefetch else 0)))
    e("s_barrier")
    groups=[(mb,p) for mb in range(2) for p in range(3)]
    def rd(gi):
        mb,p=groups[gi]
        for kk in range(6*p,6*p+6):
            v=V_BO if kk&1 else V_BE
            e("ds_read_b128 %s, v%d offset:%d" % (vr(80+(gi%3)*24+(kk-6*p)*4,4), v, (kk>>1)*4096+mb*2048))
    rd(0); rd(1)
    for gi in range(6):
        mb,p=groups[gi]
        e("s_waitcnt lgkmcnt(%d)" % (6 if gi<5 else 0))
        for kk in range(6):
            a=vr(80+(gi%3)*24+kk*4,4)
            first=(p==0 and kk==0)
            e("v_mfma_f32_16x16x32_bf16 %s, %s, %s, %s" % (vr(24+mb*8,4), a, a, "0" if first else vr(24+mb*8,4)))
            e("v_mfma_f32_16x16x32_bf16 %s, %s, %s, %s" % (vr(28+mb*8,4), a, vr(72,4), "0" if first else vr(28+mb*8,4)))
        if gi+2<6: rd(gi+2)
    e("s_nop 7"); e("s_nop 1")
    e("v_and_b32 v22, 3, v1")
    for mb in range(2):
        g=24+mb*8; sx=28+mb*8
        o=40+mb*4
        e("v_cmp_eq_u32 vcc, 1, v22"); e("s_nop 1")
        e("v_cndmask_b32 v%d, v%d, v%d, vcc" % (o, g, g+1)); e("v_cndmask_b32 v%d, v%d, v%d, vcc" % (o+1, sx, sx+1))
        e("v_cmp_eq_u32 vcc, 2, v22"); e("s_nop 1")
        e("v_cndmask_b32 v%d, v%d, v%d, vcc" % (o, o, g+2)); e("v_cndmask_b32 v%d, v%d, v%d, vcc" % (o+1, o+1, sx+2))
        e("v_cmp_eq_u32 vcc, 3, v22"); e("s_nop 1")
        e("v_cndmask_b32 v%d, v%d, v%d, vcc" % (o, o, g+3)); e("v_cndmask_b32 v%d, v%d, v%d, vcc" % (o+1, o+1, sx+3))
        e("v_mul_f32 v%d, %s, v%d" % (o+1, fhex(1.0/576.0), o+1))
        e("v_mul_f32 v%d, %s, v%d" % (o, fhex(1.0/576.0), o))
        e("v_fma_f32 v%d, -v%d, v%d, v%d" % (o, o+1, o+1, o))
        e("v_max_f32 v%d, 0, v%d" % (o, o))
        e("v_add_f32 v%d, %s, v%d" % (o, fhex(1e-5), o))
        e("v_rsq_f32 v%d, v%d" % (o, o))
    e("v_lshrrev_b32 v23, 2, v%d" % V_L15)
    e("v_lshlrev_b32 v50, 2, v%d" % V_L15)
    e("v_add_u32 v51, %d, v50" % LDS_ST)
    e("s_lshl_b32 s21, s17, 7")
    e("s_add_u32 s21, s21, 0x%x" % OFF_MEAN)
    e("v_cmp_eq_u32 vcc, v23, v%d" % V_Q)
    e("s_and_saveexec_b64 s[28:29], vcc")
    e("ds_write_b32 v51, v40")
    e("ds_write_b32 v51, v44 offset:64")
    e("s_cmp_lg_u32 s19, 0")
    e("s_cbranch_scc1 %s_nomean" % name)
    e("buffer_store_dword v41, v50, s[8:11], s21 offen %s" % flags)
    e("buffer_store_dword v45, v50, s[8:11], s21 offen offset:64 %s" % flags)
    A.label("%s_nomean" % name)
    e("s_mov_b64 exec, s[28:29]")
    e("s_waitcnt lgkmcnt(0)")
    e("s_barrier")
    e("s_endpgm")
    A.label("%s_wt" % name)
    if w1:
        e("s_cmp_ge_u32 s2, %d" % (256+NT_WT))
        e("s_cbranch_scc1 %s_swz" % name)
    e("s_sub_u32 s16, s2, 256")
    e("s_waitcnt lgkmcnt(0)")
    e("s_mov_b32 s8, s4"); e("s_mov_b32 s9, s5"); e("s_mov_b32 s10, 0x%x" % WS_BYTES); e("s_mov_b32 s11, 0x20000")
    e("s_mov_b32 s12, s36"); e("s_mov_b32 s13, s37"); e("s_mov_b32 s14, %d" % (S*289*2)); e("s_mov_b32 s15, 0x20000")
    e("s_mov_b32 s24, s38"); e("s_mov_b32 s25, s39")
    emit_wt_role2(A,16,flags)
    if w1:
        e("s_endpgm")
        A.label("%s_swz" % name)
        e("s_sub_u32 s16, s2, %d" % (256+NT_WT))
        e("s_waitcnt lgkmcnt(0)")
        e("s_mov_b32 s8, s4"); e("s_mov_b32 s9, s5"); e("s_mov_b32 s10, 0x%x" % WS_BYTES); e("s_mov_b32 s11, 0x20000")
        e("s_mov_b32 s12, s44"); e("s_mov_b32 s13, s45"); e("s_mov_b32 s14, %d" % (D*F*2)); e("s_mov_b32 s15, 0x20000")
        emit_w1_role2(A,16,swzflags)
    A.label("%s_end" % name)
    e("s_endpgm")
    kd=KD_FMT.format(name=name, vgpr=216, sgpr=64, accum=216)
    return A.text(), kd, 37888, 256+NT_WT+nsw

if __name__=="__main__":
    import sys
    t,kd,lds,grid=gen_k1()
    hdr="; @launch kernel=k1_kernel grid=(%d,1,1) block=(256,1,1) lds=%d\n" % (grid,lds)
    open(sys.argv[1],"w").write(hdr+'.amdgcn_target "amdgcn-amd-amdhsa--gfx950"\n.text\n'+t+'.section .rodata,"a"\n'+kd)
```

```python
from asmlib import *
from layout import *
from swz import *
import math

def gen_k2(name="k2_kernel", flags="", swzflags="sc1", touch=False, role="w2"):
    A=Asm(); e=A.e
    NSW={"w1":162,"w2":144,"both":306,"none":0}[role]
    A.raw(".globl %s\n.p2align 8\n.type %s,@function\n%s:" % (name,name,name))
    e("s_cmp_ge_u32 s2, %d" % (288+NSW))
    e("s_cbranch_scc1 %s_end" % name)
    e(";@S start")
    e("s_load_dwordx2 s[4:5], s[0:1], 80")
    e("s_load_dwordx2 s[6:7], s[0:1], %d" % (48 if role=="w2" else 32))
    e("s_load_dwordx2 s[36:37], s[0:1], 48")
    e("v_and_b32 v1, 63, v0")
    e("v_lshrrev_b32 v2, 6, v0")
    e("s_nop 0")
    e("v_readfirstlane_b32 s18, v2")
    e("s_cmp_ge_u32 s2, 288")
    e("s_cbranch_scc1 %s_swz" % name)
    E1=8192; E2=16384
    L15=2; Q=3; L16=4; T=5
    G=16
    E=40
    TW1=64
    TW2=80
    WR=96
    WF=TW1
    DA=104
    ACC=136
    TM=152
    e("v_and_b32 v%d, 15, v1" % L15)
    e("v_lshrrev_b32 v%d, 4, v1" % Q)
    e("v_lshlrev_b32 v%d, 4, v1" % L16)
    e("s_waitcnt lgkmcnt(0)")
    e(";@S karg")
    e("s_mov_b32 s8, s4"); e("s_mov_b32 s9, s5"); e("s_mov_b32 s10, 0x%x" % WS_BYTES); e("s_mov_b32 s11, 0x20000")
    e("s_lshl_b32 s20, s2, 13")
    e("s_lshl_b32 s21, s18, 11")
    e("s_add_u32 s22, s20, s21")
    e("s_add_u32 s23, s22, 0x%x" % OFF_XP)
    e("s_mov_b32 m0, s21")
    e("s_nop 0")
    e("buffer_load_dwordx4 v%d, s[8:11], s23 offen lds" % L16)
    e("s_add_u32 m0, s21, 1024")
    e("s_add_u32 s23, s23, 1024")
    e("buffer_load_dwordx4 v%d, s[8:11], s23 offen lds" % L16)
    e("v_lshlrev_b32 v%d, 3, v1" % T)
    e("s_add_u32 s24, s22, 0x%x" % OFF_WT)
    for pl in range(2):
        for h in range(2):
            e("buffer_load_dwordx2 %s, v%d, s[8:11], s24 offen offset:%d" % (vr(WR+(pl*2+h)*2,2), T, pl*1024+h*512))
    fl15=6; fq4=7; na=8; idx=9; a0=10
    e("v_cvt_f32_u32 v%d, v%d" % (fl15, L15))
    e("v_lshlrev_b32 v%d, 2, v%d" % (fq4, Q))
    e("v_cvt_f32_u32 v%d, v%d" % (fq4, fq4))
    e("s_lshl_b32 s25, s18, 4")
    e("v_cvt_f32_u32 v%d, s25" % 15)
    def block(dst, n_expr_reg, kbase, inv):
        e("v_add_f32 v%d, %s, v%d" % (idx, fhex(float(kbase)), fq4))
        e("v_mul_f32 v%d, v%d, v%d" % (na, n_expr_reg, idx))
        for i in range(4):
            if i==0: e("v_mov_b32 v%d, v%d" % (a0, na))
            else: e("v_fmamk_f32 v%d, v%d, %s, v%d" % (a0+i, n_expr_reg, fhex(float(i)), na))
        for i in range(4): e("v_cos_f32 v%d, v%d" % (TM+i, a0+i))
        for i in range(4): e("v_sin_f32 v%d, v%d" % (TM+4+i, a0+i))
        e("v_cvt_pk_bf16_f32 v%d, v%d, v%d" % (dst+2, TM, TM+1))
        e("v_cvt_pk_bf16_f32 v%d, v%d, v%d" % (dst+3, TM+2, TM+3))
        e("v_cvt_pk_bf16_f32 v%d, v%d, v%d" % (dst+4, TM+4, TM+5))
        e("v_cvt_pk_bf16_f32 v%d, v%d, v%d" % (dst+5, TM+6, TM+7))
        e("v_xor_b32 v%d, 0x80008000, v%d" % (dst, dst+4))
        e("v_xor_b32 v%d, 0x80008000, v%d" % (dst+1, dst+5))
    nreg=TM+8
    for a in range(2):
        e("v_add_f32 v%d, %s, v%d" % (nreg, fhex(16.0*a), fl15))
        e("v_mul_f32 v%d, %s, v%d" % (nreg, fhex(1.0/32), nreg))
        for b in range(2): block(G+(a*2+b)*6, nreg, 16*b, None)
    e("v_add_f32 v%d, v15, v%d" % (nreg, fl15))
    e("v_mul_f32 v%d, %s, v%d" % (nreg, fhex(1.0/64), nreg))
    for wp in range(4): block(E+wp*6, nreg, 16*wp, None)
    e("v_add_f32 v%d, v15, v%d" % (idx, fq4))
    for nb in range(2):
        e("v_add_f32 v%d, %s, v%d" % (nreg, fhex(16.0*nb), fl15))
        e("v_mul_f32 v%d, %s, v%d" % (nreg, fhex(1.0/2048), nreg))
        e("v_mul_f32 v%d, v%d, v%d" % (na, nreg, idx))
        for r in range(4):
            if r==0: e("v_mov_b32 v%d, v%d" % (a0, na))
            else: e("v_fmamk_f32 v%d, v%d, %s, v%d" % (a0+r, nreg, fhex(float(r)), na))
        for r in range(4): e("v_cos_f32 v%d, v%d" % (TW1+nb*8+r, a0+r))
        for r in range(4): e("v_sin_f32 v%d, v%d" % (TW1+nb*8+4+r, a0+r))
    e("v_add_f32 v%d, v15, v%d" % (nreg, fl15))
    e("v_mul_f32 v%d, %s, v%d" % (nreg, fhex(1.0/2048), nreg))
    for nb in range(2):
        e("v_add_f32 v%d, %s, v%d" % (idx, fhex(16.0*nb), fq4))
        e("v_mul_f32 v%d, v%d, v%d" % (na, nreg, idx))
        for r in range(4):
            if r==0: e("v_mov_b32 v%d, v%d" % (a0, na))
            else: e("v_fmamk_f32 v%d, v%d, %s, v%d" % (a0+r, nreg, fhex(float(r)), na))
        for r in range(4): e("v_cos_f32 v%d, v%d" % (TW2+nb*8+r, a0+r))
        for r in range(4): e("v_sin_f32 v%d, v%d" % (TW2+nb*8+4+r, a0+r))
    ta=5
    e("v_lshrrev_b32 v%d, 2, v%d" % (10, L15))
    e("v_lshl_add_u32 v%d, v%d, 2, v%d" % (10, Q, 10))
    e("v_lshlrev_b32 v%d, 7, v%d" % (10, 10))
    e("v_and_b32 v%d, 3, v%d" % (11, L15))
    e("v_lshl_add_u32 v%d, v%d, 3, v%d" % (10, 11, 10))
    e("s_lshl_b32 s25, s18, 5")
    e("v_add_u32 v%d, s25, v%d" % (ta, 10))
    xa=6
    e("v_add_u32 v%d, s21, v%d" % (xa, L16))
    e("s_waitcnt vmcnt(4)")
    e(";@S x_arr")
    e("s_barrier")
    for ks in range(2):
        e("ds_read_b64_tr_b16 %s, v%d offset:%d" % (vr(DA+ks*4,2), ta, ks*2048))
        e("ds_read_b64_tr_b16 %s, v%d offset:%d" % (vr(DA+ks*4+2,2), ta, 4096+ks*2048))
    e("s_waitcnt lgkmcnt(0)")
    RE=lambda base: vr(base+2,4)
    IM=lambda base: vr(base,4)
    def acc(part,nb): return ACC+(part*2+nb)*4
    for ks in range(2):
        for nb in range(2):
            for part in range(2):
                g=G+(nb*2+ks)*6
                d=vr(acc(part,nb),4)
                e("v_mfma_f32_16x16x32_bf16 %s, %s, %s, %s" % (d, vr(DA+ks*4,4), (RE,IM)[part](g), "0" if ks==0 else d))
    e("s_nop 7")
    if touch:
        e("s_and_b32 s27, s2, 3"); e("s_mul_i32 s27, s27, %d" % (2*663552))
        e("s_lshr_b32 s28, s2, 3"); e("s_lshl_b32 s28, s28, 2"); e("s_add_u32 s28, s28, s18"); e("s_mul_i32 s28, s28, %d" % (72*128))
        e("s_add_u32 s27, s27, s28"); e("s_add_u32 s27, s27, 0x%x" % OFF_W1S)
        e("v_lshlrev_b32 v185, 7, v1")
        e("buffer_load_dword v184, v185, s[8:11], s27 offen")
        e("v_min_u32 v185, 7, v1"); e("v_lshlrev_b32 v185, 7, v185"); e("s_add_u32 s27, s27, 8192")
        e("buffer_load_dword v184, v185, s[8:11], s27 offen")
    def unpack_w():
        e("s_waitcnt vmcnt(0)")
        for nb in range(2):
            for pl in range(2):
                for h in range(2):
                    raw=WR+(pl*2+h)*2+nb
                    e("v_lshlrev_b32 v%d, 16, v%d" % (WF+nb*8+pl*4+2*h, raw))
                    e("v_and_b32 v%d, 0xffff0000, v%d" % (WF+nb*8+pl*4+2*h+1, raw))

    def twiddle_pack(tw, dst, conj_filter=False):
        for nb in range(2):
            re=acc(0,nb); im=acc(1,nb)
            c=tw+nb*8; s=tw+nb*8+4
            for r in range(4):
                if not conj_filter:
                    e("v_mul_f32 v%d, v%d, v%d" % (TM+r, re+r, c+r))
                    e("v_mul_f32 v%d, v%d, v%d" % (TM+4+r, im+r, c+r))
                else:
                    e("v_mul_f32 v%d, v%d, v%d" % (TM+r, re+r, c+r))
                    e("v_mul_f32_e64 v%d, -v%d, v%d" % (TM+4+r, re+r, s+r))
            for r in range(4):
                if not conj_filter:
                    e("v_fma_f32 v%d, v%d, v%d, v%d" % (TM+r, im+r, s+r, TM+r))
                    e("v_fma_f32 v%d, -v%d, v%d, v%d" % (TM+4+r, re+r, s+r, TM+4+r))
                else:
                    e("v_fma_f32 v%d, -v%d, v%d, v%d" % (TM+r, im+r, s+r, TM+r))
                    e("v_fma_f32 v%d, -v%d, v%d, v%d" % (TM+4+r, im+r, c+r, TM+4+r))
            e("v_cvt_pk_bf16_f32 v%d, v%d, v%d" % (dst+nb*4, TM, TM+1))
            e("v_cvt_pk_bf16_f32 v%d, v%d, v%d" % (dst+nb*4+1, TM+2, TM+3))
            e("v_cvt_pk_bf16_f32 v%d, v%d, v%d" % (dst+nb*4+2, TM+4, TM+5))
            e("v_cvt_pk_bf16_f32 v%d, v%d, v%d" % (dst+nb*4+3, TM+6, TM+7))
    PK=TM+8
    def exchange(base, mid=None):
        for nb in range(2):
            e("ds_write_b128 v%d, %s offset:%d" % (xa, vr(PK+nb*4,4), base+nb*1024))
        if mid: mid()
        e("s_waitcnt lgkmcnt(0)")
        e("s_barrier")
        for wp in range(4):
            for nb in range(2):
                e("ds_read_b128 %s, v%d offset:%d" % (vr(DA+(wp*2+nb)*4,4), L16, base+wp*2048+nb*1024))
    e(";@S st1")
    twiddle_pack(TW1, PK)
    exchange(E1, unpack_w)
    e(";@S ex1")
    for wp in range(4):
        e("s_waitcnt lgkmcnt(%d)" % (6-2*wp))
        for nb in range(2):
            for part in range(2):
                d=vr(acc(part,nb),4)
                e("v_mfma_f32_16x16x32_bf16 %s, %s, %s, %s" % (d, (RE,IM)[part](E+wp*6), vr(DA+(wp*2+nb)*4,4), "0" if wp==0 else d))
    e("s_nop 7")
    twiddle_pack(WF, PK, conj_filter=True)
    exchange(E2)
    e(";@S ex2")
    for wp in range(4):
        e("s_waitcnt lgkmcnt(%d)" % (6-2*wp))
        for nb in range(2):
            for part in range(2):
                d=vr(acc(part,nb),4)
                e("v_mfma_f32_16x16x32_bf16 %s, %s, %s, %s" % (d, vr(DA+(wp*2+nb)*4,4), (RE,IM)[part](E+wp*6), "0" if wp==0 else d))
    e("s_nop 7")
    twiddle_pack(TW2, PK)
    e("s_nop 1")
    for nb in range(2):
        for sb in range(2):
            for part in range(2):
                d=vr(acc(part,sb),4)
                e("v_mfma_f32_16x16x32_bf16 %s, %s, %s, %s" % (d, vr(PK+nb*4,4), (RE,IM)[part](G+(sb*2+nb)*6), "0" if nb==0 else d))
    e(";@S st4")
    e("v_lshlrev_b32 v10, 7, v%d" % L15)
    e("v_lshl_add_u32 v10, v%d, 3, v10" % Q)
    e("s_lshl_b32 s25, s18, 5"); e("s_add_u32 s25, s25, s20"); e("s_add_u32 s25, s25, 0x%x" % OFF_ZP)
    e("s_add_u32 s26, s25, 4096")
    e("s_nop 4")
    for part in range(2):
        for sb in range(2):
            a=acc(part,sb)
            o=TM+(part*2+sb)*2
            e("v_cvt_pk_bf16_f32 v%d, v%d, v%d" % (o, a, a+1))
            e("v_cvt_pk_bf16_f32 v%d, v%d, v%d" % (o+1, a+2, a+3))
            e("buffer_store_dwordx2 %s, v10, s[8:11], s%d offen offset:%d %s" % (vr(o,2), 25+part, sb*2048, flags))
    e("s_endpgm")
    A.label("%s_swz" % name)
    e("s_sub_u32 s16, s2, 288")
    e("s_waitcnt lgkmcnt(0)")
    e("s_mov_b32 s8, s4"); e("s_mov_b32 s9, s5"); e("s_mov_b32 s10, 0x%x" % WS_BYTES); e("s_mov_b32 s11, 0x20000")
    e("s_mov_b32 s14, %d" % (D*F*2)); e("s_mov_b32 s15, 0x20000")
    if role=="both":
        e("s_cmp_ge_u32 s16, 162")
        e("s_cbranch_scc1 %s_swz2" % name)
    if role in ("w1","both"):
        e("s_mov_b32 s12, s6"); e("s_mov_b32 s13, s7")
        emit_w1_role2(A,16,swzflags)
    if role=="both":
        e("s_endpgm")
        A.label("%s_swz2" % name)
        e("s_sub_u32 s16, s16, 162")
    if role in ("w2","both"):
        e("s_mov_b32 s12, s36"); e("s_mov_b32 s13, s37")
        emit_w2_role2(A,16,swzflags)
    A.label("%s_end" % name)
    e("s_endpgm")
    kd=KD_FMT.format(name=name, vgpr=(188 if touch else 168), sgpr=64, accum=(188 if touch else 168))
    return A.text(), kd, 36864, 288+NSW

if __name__=="__main__":
    import sys
    t,kd,lds,grid=gen_k2()
    hdr="; @launch kernel=k2_kernel grid=(%d,1,1) block=(256,1,1) lds=%d\n" % (grid,lds)
    open(sys.argv[1],"w").write(hdr+'.amdgcn_target "amdgcn-amd-amdhsa--gfx950"\n.text\n'+t+'.section .rodata,"a"\n'+kd)
```

```python
from asmlib import *
from layout import *
from swz import *
import math
NSW=144
NMAIN=192

def gen_k3(name="k3_kernel", flags="", touch=False, swzflags="sc1", w2=False, cpf=True, w1touch=True):
    A=Asm(); e=A.e
    A.raw(".globl %s\n.p2align 8\n.type %s,@function\n%s:" % (name,name,name))
    nsw=NSW if w2 else 0
    e("s_cmp_ge_u32 s2, %d" % (NMAIN+nsw))
    e("s_cbranch_scc1 %s_end" % name)
    e(";@S start")
    e("s_load_dwordx2 s[4:5], s[0:1], 80")
    e("s_load_dwordx2 s[6:7], s[0:1], 0")
    e("s_load_dwordx2 s[36:37], s[0:1], 48")
    e("v_and_b32 v1, 63, v0")
    e("v_lshrrev_b32 v2, 6, v0")
    e("s_nop 0")
    e("v_readfirstlane_b32 s18, v2")
    if w2:
        e("s_cmp_ge_u32 s2, %d" % NMAIN)
        e("s_cbranch_scc1 %s_swz" % name)
    L15=2; Q=3; VD0=4; VD1=5; RA=6
    DL=14; T2=15; BE=16; XO=17; MO=18
    T=19
    GEN=24
    AFR=44
    BFR=116
    ACC=148
    XR=180
    MN=196
    e("s_and_b32 s16, s2, 7"); e("s_lshr_b32 s17, s2, 3")
    e("s_mul_hi_u32 s19, s17, 0x2aaaaaab")
    e("s_mul_i32 s20, s19, 6"); e("s_sub_u32 s20, s17, s20")
    e("s_lshl_b32 s19, s19, 3"); e("s_add_u32 s19, s19, s16")
    e("v_and_b32 v%d, 15, v1" % L15)
    e("v_lshrrev_b32 v%d, 4, v1" % Q)
    e("v_bfe_u32 v%d, v1, 3, 1" % T)
    e("v_lshl_add_u32 v%d, v%d, 2, v%d" % (T, Q, T))
    e("v_lshlrev_b32 v%d, 12, v%d" % (T, T))
    e("v_and_b32 v%d, 1, v%d" % (T+1, Q))
    e("v_lshlrev_b32 v%d, 1, v%d" % (T+1, T+1))
    e("v_and_b32 v%d, 7, v1" % (T+2))
    e("v_xor_b32 v%d, v%d, v%d" % (T+2, T+2, T+1))
    e("v_lshl_add_u32 v%d, v%d, 4, v%d" % (VD0, T+2, T))
    e("v_xor_b32 v%d, 64, v%d" % (VD1, VD0))
    e("s_waitcnt lgkmcnt(0)")
    e(";@S karg")
    e("s_mov_b32 s8, s4"); e("s_mov_b32 s9, s5"); e("s_mov_b32 s10, 0x%x" % WS_BYTES); e("s_mov_b32 s11, 0x20000")
    e("s_mov_b32 s12, s6"); e("s_mov_b32 s13, s7"); e("s_mov_b32 s14, %d" % (S*D*2)); e("s_mov_b32 s15, 0x20000")
    e("s_mul_i32 s21, s18, 18")
    e("s_cmp_ge_u32 s18, 2")
    e("s_cselect_b32 s22, 36, 0")
    e("s_cselect_b32 s23, 2, 0")
    e("s_sub_u32 s22, s21, s22"); e("s_lshl_b32 s22, s22, 4"); e("s_add_u32 s22, s22, s23"); e("s_lshl_b32 s22, s22, 12")
    e("s_lshl_b32 s23, s19, 7"); e("s_add_u32 s22, s22, s23"); e("s_add_u32 s22, s22, 0x%x" % OFF_ZP)
    e("s_lshl_b32 s23, s21, 10")
    for n in range(18):
        e("s_add_u32 m0, s23, %d" % (n*1024))
        if n>0: e("s_add_u32 s22, s22, %d" % (16*4096))
        else: e("s_nop 0")
        e("buffer_load_dwordx4 v%d, s[8:11], s22 offen lds" % (VD0,VD1)[n&1])
    e("s_cmp_eq_u32 s18, 3")
    e("s_cbranch_scc1 %s_w3" % name)
    e("s_mul_i32 s24, s20, 48"); e("s_lshl_b32 s25, s18, 4"); e("s_add_u32 s24, s24, s25")
    e("v_lshrrev_b32 v%d, 2, v%d" % (T, L15))
    e("v_lshl_add_u32 v%d, v%d, 3, v%d" % (T+1, Q, T))
    e("v_lshlrev_b32 v%d, 7, v%d" % (T+1, T+1))
    e("v_lshrrev_b32 v%d, 1, v%d" % (T, T))
    e("v_and_b32 v%d, 1, v%d" % (T+2, Q))
    e("v_lshl_add_u32 v%d, v%d, 1, v%d" % (T, T+2, T))
    e("v_lshl_add_u32 v%d, v%d, 5, v%d" % (T+1, T, T+1))
    e("v_and_b32 v%d, 3, v%d" % (T, L15))
    e("v_lshl_add_u32 v%d, v%d, 3, v%d" % (T+1, T, T+1))
    for nb in range(4):
        e("v_xor_b32 v%d, %d, v%d" % (RA+nb, nb<<5, T+1))
        e("v_add_u32 v%d, 0x10000, v%d" % (RA+4+nb, RA+nb))
    e("v_add_u32 v%d, s24, v%d" % (T, L15))
    e("v_and_b32 v%d, 1, v%d" % (T+3, T))
    e("v_cvt_f32_u32 v%d, v%d" % (T, T))
    e("v_mul_f32 v%d, %s, v%d" % (DL, fhex(1.0/576.0), T))
    e("v_lshlrev_b32 v%d, 31, v%d" % (T+3, T+3))
    e("v_or_b32 v%d, 0.5, v%d" % (T+3, T+3))
    e("v_mul_f32 v%d, %s, v%d" % (T, fhex(32.0), DL))
    e("v_fract_f32 v%d, v%d" % (T, T))
    e("v_cos_f32 v%d, v%d" % (T, T))
    e("v_lshlrev_b32 v%d, 3, v%d" % (T+1, Q))
    e("v_cvt_f32_u32 v%d, v%d" % (T+1, T+1))
    e("v_add_f32 v%d, v%d, v%d" % (T2, T, T))
    e("v_mul_f32 v%d, v%d, v%d" % (BE, DL, T+1))
    e("v_add_f32 v%d, %s, v%d" % (T+2, fhex(-0.25), BE))
    G=[GEN,GEN+8]
    def pack(t,g,patch=False):
        for j in range(4):
            a=g+2*j
            if patch and j==0:
                e("v_cmp_eq_u32 vcc, 0, v%d" % Q); e("s_nop 1")
                e("v_cndmask_b32 v40, v%d, v%d, vcc" % (g, T+3))
                a=None
                e("v_cvt_pk_bf16_f32 v%d, v40, v%d" % (AFR+t*4, g+1))
            else:
                e("v_cvt_pk_bf16_f32 v%d, v%d, v%d" % (AFR+t*4+j, a, a+1))
    for seq in range(2):
        for st in range(2):
            g=G[st]
            for i in range(8):
                kofs=32*st+2*(i>>1)+seq
                base = BE if (i&1)==0 else T+2
                if kofs==0: e("v_cos_f32 v%d, v%d" % (g+i, base))
                else: e("v_fmamk_f32 v%d, v%d, %s, v%d" % (g+i, DL, fhex(float(kofs)), base))
            for i in range(8):
                kofs=32*st+2*(i>>1)+seq
                if kofs: e("v_cos_f32 v%d, v%d" % (g+i, g+i))
            e("s_nop 0")
            pack(seq*9+st, g, patch=(seq==0 and st==0))
        for st in range(2,9):
            g=G[st&1]; gp=G[(st-1)&1]
            for i in range(8): e("v_fma_f32 v%d, v%d, v%d, -v%d" % (g+i, T2, gp+i, g+i))
            pack(seq*9+st,g)
    e("s_movk_i32 s25, 1152")
    e("v_mul_lo_u32 v%d, v%d, s25" % (XO, L15))
    e("v_lshl_add_u32 v%d, v%d, 3, v%d" % (XO, Q, XO))
    e("s_mul_i32 s26, s19, %d" % (64*1152)); e("s_lshl_b32 s27, s24, 1"); e("s_add_u32 s26, s26, s27")
    for nb in range(4):
        e("s_add_u32 s27, s26, %d" % (nb*16*1152))
        e("buffer_load_dwordx2 %s, v%d, s[12:15], s27 offen" % (vr(XR+nb*4,2), XO))
        e("buffer_load_dwordx2 %s, v%d, s[12:15], s27 offen offset:576" % (vr(XR+nb*4+2,2), XO))
    e("v_lshlrev_b32 v%d, 2, v%d" % (MO, L15))
    e("s_lshl_b32 s27, s19, 8"); e("s_add_u32 s27, s27, 0x%x" % OFF_MEAN)
    for nb in range(4):
        e("buffer_load_dword v%d, v%d, s[8:11], s27 offen offset:%d" % (MN+nb, MO, nb*64))
    e("s_waitcnt vmcnt(12)")
    e(";@S x_arr")
    e("s_barrier")
    def rdU(u):
        t=u>>1; h=u&1
        for nb in (2*h,2*h+1):
            v=RA+nb if t<16 else RA+4+nb
            off=(t*4096) if t<16 else (t-16)*4096
            b=BFR+(u&3)*8+(nb&1)*4
            e("ds_read_b64_tr_b16 %s, v%d offset:%d" % (vr(b,2), v, off))
            e("ds_read_b64_tr_b16 %s, v%d offset:%d" % (vr(b+2,2), v, off+512))
    for u in range(3): rdU(u)
    for u in range(36):
        t=u>>1; h=u&1; par=t//9
        left=min(35,u+2)-u
        e("s_waitcnt lgkmcnt(%d)" % (4*left))
        for nb in (2*h,2*h+1):
            d=vr(ACC+par*16+nb*4,4)
            e("v_mfma_f32_16x16x32_bf16 %s, %s, %s, %s" % (d, vr(AFR+t*4,4), vr(BFR+(u&3)*8+(nb&1)*4,4), "0" if t%9==0 else d))
        if u+3<36: rdU(u+3)
    sc=2.0/(2048.0*576.0)
    e("s_mov_b32 s28, %s" % fhex(sc))
    e("s_add_u32 s26, s26, 0x%x" % OFF_HC)
    e("s_waitcnt vmcnt(0)")
    e("s_nop 4")
    for nb in range(4):
        E=ACC+nb*4; O=ACC+16+nb*4
        for half in range(2):
            xr=XR+nb*4+half*2
            t0=24
            e("v_lshlrev_b32 v%d, 16, v%d" % (t0, xr)); e("v_and_b32 v%d, 0xffff0000, v%d" % (t0+1, xr))
            e("v_lshlrev_b32 v%d, 16, v%d" % (t0+2, xr+1)); e("v_and_b32 v%d, 0xffff0000, v%d" % (t0+3, xr+1))
            for r in range(4): e("v_sub_f32 v%d, v%d, v%d" % (t0+r, t0+r, MN+nb))
            for r in range(4):
                if half==0: e("v_add_f32 v%d, v%d, v%d" % (t0+4+r, E+r, O+r))
                else: e("v_sub_f32 v%d, v%d, v%d" % (t0+4+r, E+r, O+r))
            for r in range(4): e("v_fma_f32 v%d, v%d, s28, v%d" % (t0+r, t0+4+r, t0+r))
            o=32+((nb*2+half)&1)*2
            e("v_cvt_pk_bf16_f32 v%d, v%d, v%d" % (o, t0, t0+1))
            e("v_cvt_pk_bf16_f32 v%d, v%d, v%d" % (o+1, t0+2, t0+3))
            e("s_add_u32 s27, s26, %d" % (nb*16*1152))
            e("buffer_store_dwordx2 %s, v%d, s[8:11], s27 offen offset:%d %s" % (vr(o,2), XO, half*576, flags))
    e("s_endpgm")
    A.label("%s_w3" % name)
    if cpf:
        e("s_getpc_b64 s[40:41]")
        A.label("%s_pc1" % name)
        e("s_add_u32 s40, s40, k4_kernel - %s_pc1" % name); e("s_addc_u32 s41, s41, 0")
        e("s_and_b32 s42, s17, 3"); e("s_lshl_b32 s42, s42, 13")
        e("v_lshlrev_b32 v30, 7, v1"); e("v_add_u32 v30, s42, v30")
        e("v_min_u32 v30, text_end - k4_kernel - 4, v30")
        e("global_load_dword v31, v30, s[40:41]")
    if w1touch:
        e("s_mul_i32 s24, s17, 144")
        e("v_add_u32 v32, s24, v1")
        for i in range(3):
            if i: e("v_add_u32 v32, 64, v32")
            e("v_min_u32 v33, 3455, v32")
            e("v_mul_u32_u24 v34, 0x%x, v33" % ((2**22+431)//432)); e("v_lshrrev_b32 v34, 22, v34")
            e("v_mul_u32_u24 v35, 432, v34"); e("v_sub_u32 v35, v33, v35")
            e("s_mov_b32 s25, 165888"); e("v_mul_lo_u32 v34, v34, s25"); e("v_lshl_add_u32 v34, v35, 7, v34")
            e("s_and_b32 s26, s16, 3"); e("s_mul_i32 s26, s26, %d" % (2*663552)); e("s_add_u32 s26, s26, 0x%x" % OFF_W1S)
            e("buffer_load_dword v%d, v34, s[8:11], s26 offen" % (36+i))
    e("s_waitcnt vmcnt(%d)" % ((1 if cpf else 0)+(3 if w1touch else 0)))
    e("s_barrier")
    if touch:
        e("s_and_b32 s24, s16, 3"); e("s_mul_i32 s24, s24, %d" % (2*663552)); e("s_mul_i32 s25, s17, %d" % (432*128)); e("s_add_u32 s24, s24, s25"); e("s_add_u32 s24, s24, 0x%x" % OFF_W2S)
        e("v_lshlrev_b32 v30, 7, v1")
        for i in range(7):
            if i==6:
                e("v_min_u32 v31, 47, v1"); e("v_lshlrev_b32 v30, 7, v31")
            e("buffer_load_dword v%d, v30, s[8:11], s24 offen" % (40+i))
            e("s_add_u32 s24, s24, 8192")
    if w2:
        e("s_endpgm")
        A.label("%s_swz" % name)
        e("s_sub_u32 s16, s2, %d" % NMAIN)
        e("s_waitcnt lgkmcnt(0)")
        e("s_mov_b32 s8, s4"); e("s_mov_b32 s9, s5"); e("s_mov_b32 s10, 0x%x" % WS_BYTES); e("s_mov_b32 s11, 0x20000")
        e("s_mov_b32 s12, s36"); e("s_mov_b32 s13, s37"); e("s_mov_b32 s14, %d" % (D*F*2)); e("s_mov_b32 s15, 0x20000")
        emit_w2_role2(A,16,swzflags)
    A.label("%s_end" % name)
    e("s_endpgm")
    kd=KD_FMT.format(name=name, vgpr=200, sgpr=48, accum=200)
    return A.text(), kd, 73728, NMAIN+nsw

if __name__=="__main__":
    import sys
    sys.path.insert(0,".")
    from k1 import gen_k1
    from k2 import gen_k2
    parts=[("k1_kernel",)+gen_k1(), ("k2_kernel",)+gen_k2(), ("k3_kernel",)+gen_k3()]
    hdr="".join("; @launch kernel=%s grid=(%d,1,1) block=(256,1,1) lds=%d\n" % (n,g,l) for n,t,kd,l,g in parts)
    s=hdr+'.amdgcn_target "amdgcn-amd-amdhsa--gfx950"\n.text\n'+"".join(p[1] for p in parts)+'.section .rodata,"a"\n'+"".join(p[2] for p in parts)
    open(sys.argv[1],"w").write(s)
```

```python
from asmlib import *
from layout import *
import math

def gen_k4(name="k4_kernel", P=5, P0=2, store_flags="", dbg_time=False, warm=False, gelu_end=89, gelu_start=30, stage=True, mapA=True, ext=True, PD=10, fuse=False, spin=4000, gfree=(51,71,90), nostores=False, stamp_steps=(0,12,24,36,54,72,90)):
    A=Asm(); e=A.e
    V_LANE=1; V_L16=2
    V_AE,V_AO,V_AE8,V_AO8,V_HE,V_HO,V_HE8,V_HO8 = 3,4,5,6,7,8,9,10
    V_WA=11; V_GE,V_GO,V_GE8,V_GO8 = 14,15,16,17
    V_RSTD=18; V_BIAS=22; V_BRAW=34; V_C1=52; V_C2=53
    V_X=54; V_T=58; V_PK=62; V_GRAM=68; V_ST=72
    ACC=[80,128,176]
    T=224
    A_RING=0; A_ACT=12*P; A_GR=A_ACT+32; A_DUMMY=A_GR+8; A_D=A_DUMMY+4
    A_D=(A_D+3)//4*4
    NAGPR=A_D+144
    assert NAGPR<=256, NAGPR
    LDS_H=73728; LDS_RSTD=147456
    vm=VQ("vm",63); lg=VQ("lgkm",15)
    stamps=[]
    def stamp(nm):
        if not dbg_time: return
        i=len(stamps); stamps.append(nm)
        A.e("s_memtime s[%d:%d]" % (44+2*i,45+2*i))
    A.raw(".globl %s\n.p2align 8\n.type %s,@function\n%s:" % (name,name,name))
    e("s_cmp_ge_u32 s2, 256")
    e("s_cbranch_scc1 %s_end" % name)
    e("s_load_dwordx2 s[4:5], s[0:1], 80")
    e("s_load_dwordx2 s[6:7], s[0:1], 40")
    if fuse:
        e("s_load_dwordx4 s[32:35], s[0:1], 56")
    stamp("start")
    e("v_and_b32 v%d, 63, v0" % V_LANE)
    e("v_lshrrev_b32 v%d, 6, v0" % T)
    if mapA:
        e("s_lshr_b32 s31, s2, 3")
        e("s_and_b32 s16, s2, 3"); e("s_lshl_b32 s16, s16, 1"); e("s_and_b32 s17, s31, 1"); e("s_add_u32 s16, s16, s17")
        e("s_bfe_u32 s17, s2, 0x10002"); e("s_lshl_b32 s17, s17, 4"); e("s_lshr_b32 s19, s31, 1"); e("s_add_u32 s17, s17, s19")
    else:
        e("s_and_b32 s16, s2, 7")
        e("s_lshr_b32 s17, s2, 3")
    e("v_readfirstlane_b32 s18, v%d" % T)
    e("v_lshlrev_b32 v%d, 4, v%d" % (V_L16, V_LANE))
    e("v_lshrrev_b32 v%d, 4, v%d" % (T+2, V_LANE))
    e("v_lshrrev_b32 v%d, 3, v%d" % (T+9, V_LANE))
    e("s_lshl_b32 s19, s18, 4")
    e("v_add_u32 v%d, s19, v%d" % (T+9, T+9))
    e("s_movk_i32 s23, 1152")
    e("v_mul_lo_u32 v%d, v%d, s23" % (T+9, T+9))
    e("v_and_b32 v%d, 7, v%d" % (T+10, V_LANE))
    e("v_xor_b32 v%d, v%d, v%d" % (T+11, T+10, T+2))
    e("v_xor_b32 v%d, 4, v%d" % (T+12, T+11))
    e("v_lshl_add_u32 v%d, v%d, 4, v%d" % (T+11, T+11, T+9))
    e("v_lshl_add_u32 v%d, v%d, 4, v%d" % (T+12, T+12, T+9))
    e("v_add_u32 v%d, %d, v%d" % (T+12, 8*1152, T+12))
    e("s_mul_i32 s23, s17, %d" % (64*1152))
    e("s_add_u32 s23, s23, 0x%x" % OFF_HC)
    e("s_lshl_b32 s24, s18, 11")
    e("s_lshl_b32 s25, s16, 2"); e("s_add_u32 s25, s25, s18"); e("s_mul_i32 s25, s25, 165888")
    e("s_add_u32 s20, s25, 0x%x" % OFF_W1S)
    e("s_add_u32 s21, s25, 0x%x" % OFF_W2S)
    e("s_waitcnt lgkmcnt(0)")
    stamp("karg")
    e("s_mov_b32 s8, s4"); e("s_mov_b32 s9, s5"); e("s_mov_b32 s10, 0x%x" % WS_BYTES); e("s_mov_b32 s11, 0x20000")
    dma_ids={}
    def dma(cb,g):
        L=["s_add_u32 m0, s24, %d" % (cb*8192 + g*1024),
           ("s_add_u32 s23, s23, 128" if (g==0 and cb>0) else "s_nop 0"),
           ("vmid", "buffer_load_dwordx4 v%d, s[8:11], s23 offen lds" % (T+11+g), dma_ids, (cb,g))]
        return L
    def emit_filler(f):
        if isinstance(f,str): e(f)
        elif f[0]=="call":
            s=f[1]()
            if s: e(s)
        elif f[0]=="lds": e(f[1]); lg.issue()
        elif f[0]=="vm": e(f[1]); vm.issue()
        elif f[0]=="vmid": e(f[1]); f[2][f[3]]=vm.issue()
        elif f[0]=="grp":
            for g in f[1]: emit_filler(g)
    ncb0 = 3 if stage else 9
    for cb in range(ncb0):
        for g in range(2):
            for f in dma(cb,g): emit_filler(f)
    ring_ids={}
    gfree=list(gfree)
    pools=[]
    for k in range(P): pools.append(["a", A_RING+12*k, -1, 999])
    for cc in range(3):
        for k in range(4): pools.append(["a", A_D+cc*48+12*k, -1, 54+6*cc])
    for c,fr in ((0,gfree[0]),(1,gfree[1]),(2,gfree[2])):
        for k in range(4): pools.append(["v", ACC[c]+12*k, fr, 999])
    slot_free=[p[2] for p in pools]
    slot_of={}; issue_at={}
    def plan():
        t=-1; cnt={}
        for n in range(108):
            want=max(n-PD, -1 if n<P0 else 0)
            if n<P0: want=-1
            tt=max(want, issue_at.get(n-1,-1))
            while True:
                if tt>=0 and cnt.get(tt,0)>=2: tt+=1; continue
                cand=[i for i,p in enumerate(pools) if slot_free[i]<=tt and p[3]>n]
                if cand: break
                tt+=1
                assert tt<=n-1, ("no slot", n, tt)
            i=min(cand,key=lambda i:(pools[i][3],i))
            slot_of[n]=i; issue_at[n]=tt; cnt[tt]=cnt.get(tt,0)+1
            slot_free[i]=n+1
            assert tt<n or n<P0, (n,tt)
    plan()
    print("prefetch distance: min %d, by phase" % min(n-issue_at[n] for n in range(P0,100)), [n-issue_at[n] for n in (10,30,50,56,62,70,80,95,107)])
    def wreg_of(t, mb):
        p=pools[slot_of[t]]
        return (ar if p[0]=="a" else vr)(p[1]+mb*4,4)
    def issue_w(t, mb):
        e("buffer_load_dwordx4 %s, v%d, s[8:11], s20 offen offset:%d" % (wreg_of(t,mb), V_L16, mb*1024))
        ring_ids[(t,mb)]=vm.issue()
    def adv_w(t):
        if t+1==54: e("s_mov_b32 s20, s21")
        else: e("s_add_u32 s20, s20, 3072")
    for t in range(P0):
        for mb in range(3): issue_w(t,mb)
        adv_w(t)
    nxt=[P0]
    stamp("issued")
    e("s_mov_b32 s12, s6"); e("s_mov_b32 s13, s7"); e("s_mov_b32 s14, %d" % (F*2)); e("s_mov_b32 s15, 0x20000")
    e("v_and_b32 v%d, 15, v%d" % (T+1, V_LANE))
    e("v_lshrrev_b32 v%d, 1, v%d" % (T+3, T+1))
    e("v_xor_b32 v%d, v%d, v%d" % (T+4, T+2, T+3))
    e("v_lshlrev_b32 v%d, 4, v%d" % (T+4, T+4))
    e("v_lshl_add_u32 v%d, v%d, 7, v%d" % (V_AE, T+1, T+4))
    e("v_xor_b32 v%d, 64, v%d" % (V_AO, V_AE))
    e("v_add_u32 v%d, 0x10000, v%d" % (V_AE8, V_AE))
    e("v_add_u32 v%d, 0x10000, v%d" % (V_AO8, V_AO))
    e("v_add_u32 v%d, %d, v%d" % (V_HE, LDS_H, V_AE))
    e("v_add_u32 v%d, %d, v%d" % (V_HO, LDS_H, V_AO))
    e("v_add_u32 v%d, %d, v%d" % (V_HE8, LDS_H+0x10000, V_AE))
    e("v_add_u32 v%d, %d, v%d" % (V_HO8, LDS_H+0x10000, V_AO))
    e("v_add_u32 v%d, s24, v%d" % (V_GE, V_AE))
    e("v_add_u32 v%d, s24, v%d" % (V_GO, V_AO))
    e("v_add_u32 v%d, s24, v%d" % (V_GE8, V_AE8))
    e("v_add_u32 v%d, s24, v%d" % (V_GO8, V_AO8))
    e("s_mul_i32 s19, s18, 6")
    e("v_lshrrev_b32 v%d, 1, v%d" % (T+5, T+2))
    e("v_add_u32 v%d, s19, v%d" % (T+5, T+5))
    e("v_and_b32 v%d, 1, v%d" % (T+6, T+2))
    e("v_lshlrev_b32 v%d, 3, v%d" % (T+6, T+6))
    e("v_lshl_add_u32 v%d, v%d, 7, v%d" % (T+6, T+1, T+6))
    e("v_add_u32 v%d, %d, v%d" % (T+6, LDS_H, T+6))
    for mb in range(3):
        e("v_add_u32 v%d, %d, v%d" % (T+7, 2*mb, T+5))
        e("v_lshrrev_b32 v%d, 3, v%d" % (T+8, T+7))
        e("v_and_b32 v%d, 7, v%d" % (T+7, T+7))
        e("v_xor_b32 v%d, v%d, v%d" % (T+7, T+7, T+3))
        e("v_lshlrev_b32 v%d, 4, v%d" % (T+7, T+7))
        e("v_lshl_add_u32 v%d, v%d, 13, v%d" % (T+7, T+8, T+7))
        e("v_add_u32 v%d, v%d, v%d" % (V_WA+mb, T+7, T+6))
    c1 = 2.0*math.sqrt(2.0/math.pi)*math.log2(math.e); c2 = c1*0.044715
    kap_=c2**(1.0/3.0)
    e("v_mov_b32 v%d, %s" % (V_C1, fhex(c1/kap_)))
    e("v_mov_b32 v%d, %s" % (V_C2, fhex(kap_)))
    e("s_lshl_b32 s25, s16, 5"); e("s_add_u32 s25, s25, s17"); e("s_lshl_b32 s25, s25, 2"); e("s_add_u32 s25, s25, s18")
    e("s_mul_i32 s25, s25, 18432")
    e("s_add_u32 s22, s25, 0x%x" % OFF_PART)
    e("v_lshlrev_b32 v%d, 3, v%d" % (T+13, T+2))
    e("s_mul_i32 s25, s16, 1152"); e("s_mul_i32 s26, s18, 288"); e("s_add_u32 s30, s25, s26")
    extra={t:[] for t in range(108)}
    if stage:
        for cb in range(3,9):
            st=2*(cb-3)
            for g in range(2): extra[st+g].append(("grp", dma(cb,g)))
    bias_ids={}
    for c in range(3):
        for mb in range(3):
            extra[12+2*c].append(("vmid","buffer_load_dwordx2 %s, v%d, s[12:15], s30 offen offset:%d" % (vr(V_BRAW+(c*3+mb)*2,2), T+13, c*96+mb*32), bias_ids,(c,mb)))
    if warm:
        if mapA:
            L=["s_mul_i32 s26, s18, 81", "v_add_u32 v%d, s26, v%d" % (T+14, V_LANE), "v_lshlrev_b32 v%d, 7, v%d" % (T+14, T+14),
               "s_and_b32 s25, s2, 3", "s_mul_i32 s25, s25, %d" % (2*663552), "s_mul_i32 s26, s31, %d" % (324*128), "s_add_u32 s25, s25, s26",
               "s_add_u32 s27, s25, 0x%x" % OFF_W2S, ("vm","buffer_load_dword a%d, v%d, s[8:11], s27 offen" % (A_DUMMY+1, T+14)),
               "v_min_u32 v%d, 16, v%d" % (T+15, V_LANE), "s_mul_i32 s26, s18, 81", "s_add_u32 s26, s26, 64", "v_add_u32 v%d, s26, v%d" % (T+15, T+15), "v_lshlrev_b32 v%d, 7, v%d" % (T+15, T+15),
               ("vm","buffer_load_dword a%d, v%d, s[8:11], s27 offen" % (A_DUMMY+2, T+15))]
        else:
            L=["s_lshl_b32 s26, s18, 6", "v_add_u32 v%d, s26, v%d" % (T+14, V_LANE), "v_min_u32 v%d, 161, v%d" % (T+14, T+14),
               "v_lshlrev_b32 v%d, 7, v%d" % (T+14, T+14), "s_mul_i32 s25, s16, 663552", "s_mul_i32 s26, s17, 20736", "s_add_u32 s25, s25, s26",
               "s_add_u32 s27, s25, 0x%x" % OFF_W2S, ("vm","buffer_load_dword a%d, v%d, s[8:11], s27 offen" % (A_DUMMY+1, T+14))]
        extra[19]+=L
    e(waitcnt(vm=vm.need(dma_ids[(ncb0-1,1)])))
    stamp("dma_done")
    e("s_barrier")
    act_ids={}
    def step_info(t):
        if t<36:
            kap=t//12; c=(t%12)//6; ks=6*kap+t%6
            return ("g1", ks, ACC[c], ks==0, False)
        if t<54: return ("g1", t-36, ACC[2], t==36, False)
        u=t-54; kap=u//18; cc=(u%18)//6; ksl=u%6
        return ("g2", 6*kap+ksl, A_D+cc*48, kap==0 and ksl==0, True)
    def gram_step(t):
        return t<36 and (t%12)<6
    def next_gram(t):
        n=t+1
        while n<36 and not gram_step(n): n+=1
        return n if n<36 else None
    def issue_act(t, nb):
        kind,ks,_,_,_=step_info(t)
        cb=ks>>1; odd=ks&1
        regs=(V_AE,V_AO,V_AE8,V_AO8) if kind=="g1" else (V_HE,V_HO,V_HE8,V_HO8)
        v,off=(regs[odd], cb*8192+nb*2048) if cb<8 else (regs[2+odd], nb*2048)
        e("ds_read_b128 %s, v%d offset:%d" % (ar(A_ACT+(t&1)*16+nb*4,4), v, off))
        act_ids[(t,nb)]=lg.issue()
    gr_ids={}
    def issue_gr(t):
        ks=step_info(t)[1]
        cb=ks>>1; odd=ks&1
        v,off=((V_GE,V_GO)[odd], cb*8192) if cb<8 else ((V_GE8,V_GO8)[odd], 0)
        e("ds_read_b128 %s, v%d offset:%d" % (ar(A_GR+(t&1)*4,4), v, off))
        gr_ids[t]=lg.issue()
    for nb in range(4): issue_act(0,nb)
    issue_gr(0)

    def gelu_fillers(c, acc):
        L=[("call", lambda c=c: waitcnt(vm=vm.need(bias_ids[(c,2)])))]
        for mb in range(3):
            raw=V_BRAW+(c*3+mb)*2; b=V_BIAS+mb*4
            L+=["v_lshlrev_b32 v%d, 16, v%d" % (b+0, raw), "v_and_b32 v%d, 0xffff0000, v%d" % (b+1, raw),
                "v_lshlrev_b32 v%d, 16, v%d" % (b+2, raw+1), "v_and_b32 v%d, 0xffff0000, v%d" % (b+3, raw+1)]
            for r in range(4): L.append("v_mul_f32 v%d, v%d, v%d" % (b+r, V_C2, b+r))
        k=0
        for mb in range(3):
            for nb in range(4):
                a=acc+(mb*4+nb)*4; b=V_BIAS+mb*4; pkr=V_PK+(k&1)*2; k+=1
                for r in range(4): L.append("v_fma_f32 v%d, v%d, v%d, v%d" % (V_X+r, a+r, V_RSTD+nb, b+r))
                for r in range(4): L.append("v_fma_f32 v%d, v%d, v%d, v%d" % (V_T+r, V_X+r, V_X+r, V_C1))
                for r in range(4): L.append("v_mul_f32 v%d, v%d, v%d" % (V_T+r, V_X+r, V_T+r))
                for r in range(4): L.append("v_exp_f32_e64 v%d, -v%d" % (V_T+r, V_T+r))
                for r in range(4): L.append("v_fma_f32 v%d, v%d, v%d, v%d" % (V_T+r, V_T+r, V_C2, V_C2))
                for r in range(4): L.append("v_rcp_f32 v%d, v%d" % (V_T+r, V_T+r))
                for r in range(4): L.append("v_mul_f32 v%d, v%d, v%d" % (V_X+r, V_X+r, V_T+r))
                L.append("v_cvt_pk_bf16_f32 v%d, v%d, v%d" % (pkr, V_X, V_X+1))
                L.append("v_cvt_pk_bf16_f32 v%d, v%d, v%d" % (pkr+1, V_X+2, V_X+3))
                L.append(("lds", "ds_write_b64 v%d, %s offset:%d" % (V_WA+mb, vr(pkr,2), c*24576+nb*2048)))
        return L
    def store_fillers(cc):
        L=[]
        acc=A_D+cc*48
        for jj in range(6):
            st=V_ST+(jj&1)*4
            for tt in range(2):
                a=acc+(2*jj+tt)*4
                for r in range(4): L.append("v_accvgpr_read_b32 v%d, a%d" % (V_X+tt*4+r, a+r))
            for tt in range(2):
                L.append("v_cvt_pk_bf16_f32 v%d, v%d, v%d" % (st+2*tt, V_X+tt*4, V_X+tt*4+1))
                L.append("v_cvt_pk_bf16_f32 v%d, v%d, v%d" % (st+2*tt+1, V_X+tt*4+2, V_X+tt*4+3))
            if not nostores: L.append(("vm", "buffer_store_dwordx4 %s, v%d, s[8:11], s22 offen %s" % (vr(st,4), V_L16, store_flags)))
            L.append("s_add_u32 s22, s22, 1024")
        return L
    def stats_fillers():
        L=[]; g=V_GRAM
        L+=["v_and_b32 v%d, 3, v%d" % (T+20, V_LANE), "v_cmp_eq_u32 vcc, 1, v%d" % (T+20), "s_nop 1",
            "v_cndmask_b32 v%d, v%d, v%d, vcc" % (T+21, g, g+1), "v_cmp_eq_u32 vcc, 2, v%d" % (T+20), "s_nop 1",
            "v_cndmask_b32 v%d, v%d, v%d, vcc" % (T+21, T+21, g+2), "v_cmp_eq_u32 vcc, 3, v%d" % (T+20), "s_nop 1",
            "v_cndmask_b32 v%d, v%d, v%d, vcc" % (T+21, T+21, g+3),
            "v_mov_b32 v%d, %s" % (T+22, fhex(1e-5)), "v_fmac_f32 v%d, %s, v%d" % (T+22, fhex(1.0/576.0), T+21),
            "v_rsq_f32 v%d, v%d" % (T+22, T+22), "v_lshrrev_b32 v%d, 2, v%d" % (T+23, T+1), "v_mul_f32 v%d, v%d, v%d" % (T+22, V_C2, T+22), "s_lshl_b32 s19, s18, 6",
            "v_lshlrev_b32 v%d, 2, v%d" % (T+24, T+1), "v_add_u32 v%d, s19, v%d" % (T+24, T+24),
            "v_add_u32 v%d, %d, v%d" % (T+24, LDS_RSTD, T+24), "v_cmp_eq_u32 vcc, v%d, v%d" % (T+23, T+2),
            "s_and_saveexec_b64 s[28:29], vcc", ("lds", "ds_write_b32 v%d, v%d" % (T+24, T+22)), "s_mov_b64 exec, s[28:29]"]
        return L

    rst=[None]
    g0=gelu_fillers(0,ACC[0]); g0.insert(25,("call", lambda: waitcnt(lgkm=lg.need(rst[0]))))
    g1=gelu_fillers(1,ACC[1]); g2=gelu_fillers(2,ACC[2])
    gq=g0+g1+g2
    ng=len(gq); gb=[0,len(g0),len(g0)+len(g1),ng]
    gpos=0
    gdone={}
    sq=[]
    rstd_id=None
    for t in range(108):
        kind,ks,acc,first,isA=step_info(t)
        if t in stamp_steps: stamp("t%d" % t)
        bar = t in ((11,23,30,53,71,89) if stage else (30,53,71,89))
        nv=vm.need(ring_ids[(t,2)])
        if stage and t in (11,23):
            cb=5 if t==11 else 8
            n2=vm.need(dma_ids[(cb,1)])
            if n2 is not None: nv = n2 if nv is None else min(nv,n2)
        if bar: lg.drain(); nl=0
        else:
            last=act_ids[(t,3)]
            if gram_step(t): last=max(last, gr_ids[t])
            nl=lg.need(last)
        w=waitcnt(vm=nv, lgkm=nl)
        if w: e(w)
        if bar: e("s_barrier")
        if t==30:
            e("v_lshlrev_b32 v%d, 2, v%d" % (T+25, T+1))
            e("v_add_u32 v%d, %d, v%d" % (T+25, LDS_RSTD, T+25))
            for nb in range(4):
                e("ds_read_b32 v%d, v%d offset:%d" % (V_RSTD+nb, T+25, nb*64)); rst[0]=lg.issue()
        mine=list(extra[t])
        if gelu_start<=t<gelu_end:
            target=ng*(t-gelu_start+1)//(gelu_end-gelu_start)
            lim = gb[0 if t<30 else 1 if t<36 else 2 if t<54 else 3]
            target=min(target,lim)
            g=gq[gpos:target]
            mine+=g; gpos=max(gpos,target)
            for c in range(3):
                if gpos>=gb[c+1] and c not in gdone: gdone[c]=t
        if t in (96,102): sq=store_fillers(0 if t==96 else 1)
        if sq:
            left = (102-t) if t<102 else (108-t)
            n=-(-len(sq)//left); mine+=sq[:n]; sq=sq[n:]
        per=[len(mine)*(i+1)//12 - len(mine)*i//12 for i in range(12)]
        pos=0
        todo=[n for n in range(P0,108) if issue_at[n]==t]
        for i in range(12):
            mb=i//4; nb=i%4
            wreg=wreg_of(t,mb); areg=ar(A_ACT+(t&1)*16+nb*4,4)
            d=ar(acc+i*4,4) if isA else vr(acc+i*4,4)
            e("v_mfma_f32_16x16x32_bf16 %s, %s, %s, %s" % (d, wreg, areg, "0" if first else d))
            if i<4 and t+1<108: issue_act(t+1,i)
            if i==4 and gram_step(t):
                g=ar(A_GR+(t&1)*4,4)
                e("v_mfma_f32_16x16x32_bf16 %s, %s, %s, %s" % (vr(V_GRAM,4), g, g, "0" if t==0 else vr(V_GRAM,4)))
            if i==5 and t+1<36 and gram_step(t+1): issue_gr(t+1)
            if len(todo)==2 and i<3:
                issue_w(todo[0], i)
                if i==2: adv_w(todo[0])
            if todo and nb==3:
                issue_w(todo[-1], mb)
                if mb==2: adv_w(todo[-1])
            for f in mine[pos:pos+per[i]]: emit_filler(f)
            pos+=per[i]
        if t==29:
            e("s_nop 7")
            for f in stats_fillers(): emit_filler(f)
    assert gpos==ng and not sq, (gpos,ng,len(sq))
    for c in range(3): assert gdone[c]<gfree[c], (gdone,gfree)
    assert gdone[0]<53 and gdone[1]<71 and gdone[2]<89, gdone
    print("gelu chunk done at steps", gdone)
    e("s_nop 7")
    for f in store_fillers(2): emit_filler(f)
    if fuse:
        assert store_flags=="sc1"
        stamp("stores_issued")
        LDS_MASK=LDS_RSTD+256
        e("s_waitcnt vmcnt(0)")
        e("s_barrier")
        stamp("drained")
        e("s_lshl_b32 s25, s17, 8"); e("s_add_u32 s25, s25, 0x%x" % OFF_CNT)
        e("s_lshl_b32 s26, 1, s16")
        e("s_cmp_lg_u32 s18, 0")
        e("s_cbranch_scc1 %s_wm" % name)
        e("s_mov_b64 exec, 1")
        e("v_mov_b32 v60, 0"); e("v_mov_b32 v61, 1")
        e("buffer_atomic_add v61, v60, s[8:11], s25 offen sc0")
        e("s_waitcnt vmcnt(0)")
        e("v_readfirstlane_b32 s27, v61")
        e("s_nop 3")
        e("s_and_b32 s28, s27, 0xff")
        e("s_cmp_eq_u32 s28, 7")
        e("s_cbranch_scc0 %s_spin0" % name)
        e("s_lshr_b32 s27, s27, 8"); e("s_and_b32 s27, s27, 0xff"); e("s_or_b32 s26, s26, s27")
        e("s_branch %s_pub" % name)
        A.label("%s_spin0" % name)
        e("s_mov_b32 s29, %d" % spin)
        A.label("%s_spin" % name)
        e("buffer_load_dword v61, v60, s[8:11], s25 offen sc1")
        e("s_waitcnt vmcnt(0)")
        e("v_readfirstlane_b32 s27, v61")
        e("s_nop 3")
        e("s_and_b32 s28, s27, 0xff")
        e("s_cmp_eq_u32 s28, 8")
        e("s_cbranch_scc1 %s_pub" % name)
        e("s_sub_u32 s29, s29, 1")
        e("s_cmp_lg_u32 s29, 0")
        e("s_cbranch_scc1 %s_spin" % name)
        e("s_lshl_b32 s27, s26, 8")
        e("v_mov_b32 v61, s27")
        e("buffer_atomic_or v61, v60, s[8:11], s25 offen sc0")
        e("s_waitcnt vmcnt(0)")
        e("v_readfirstlane_b32 s27, v61")
        e("s_nop 3")
        e("s_and_b32 s28, s27, 0xff")
        e("s_cmp_eq_u32 s28, 8")
        e("s_cselect_b32 s26, s26, 0")
        A.label("%s_pub" % name)
        e("v_mov_b32 v61, s26")
        e("v_mov_b32 v60, %d" % LDS_MASK)
        e("ds_write_b32 v60, v61")
        e("s_waitcnt lgkmcnt(0)")
        e("s_mov_b64 exec, -1")
        A.label("%s_wm" % name)
        e("s_barrier")
        e("v_mov_b32 v60, %d" % LDS_MASK)
        e("ds_read_b32 v61, v60")
        e("v_and_b32 v62, 15, v%d" % V_LANE); e("v_lshrrev_b32 v63, 4, v%d" % V_LANE)
        e("s_movk_i32 s27, 1152"); e("v_mul_lo_u32 v64, v62, s27"); e("v_lshl_add_u32 v64, v63, 3, v64")
        e("v_lshlrev_b32 v65, 2, v62")
        e("v_lshlrev_b32 v66, 3, v63")
        e("v_mov_b32 v68, 0x00003f80"); e("v_mov_b32 v69, 0x3f800000")
        e("s_mov_b32 s36, s32"); e("s_mov_b32 s37, s33"); e("s_mov_b32 s38, 1152"); e("s_mov_b32 s39, 0x20000")
        e("s_mov_b32 s40, s34"); e("s_mov_b32 s41, s35"); e("s_mov_b32 s42, %d" % (S*D*2)); e("s_mov_b32 s43, 0x20000")
        e("s_waitcnt lgkmcnt(0)")
        e("v_readfirstlane_b32 s26, v61")
        e("s_nop 3")
        stamp("mask")
        A.label("%s_loop" % name)
        e("s_cmp_eq_u32 s26, 0")
        e("s_cbranch_scc1 %s_done" % name)
        e("s_ff1_i32_b32 s27, s26"); e("s_bitset0_b32 s26, s27")
        e("s_mul_i32 s27, s27, 9"); e("s_add_u32 s27, s27, s18")
        def blk_loads(sg):
            R=80+40*sg
            e("s_mul_hi_u32 s28, s27, 0x%x" % ((2**32+17)//18)); e("s_mul_i32 s29, s28, 18"); e("s_sub_u32 s29, s27, s29")
            e("s_mul_hi_u32 s30, s29, 0x2aaaaaab"); e("s_mul_i32 s31, s30, 6"); e("s_sub_u32 s31, s29, s31")
            e("s_mul_i32 s28, s28, 144"); e("s_mul_i32 s30, s30, 48"); e("s_add_u32 s28, s28, s30")
            e("s_lshr_b32 s30, s31, 1"); e("s_lshl_b32 s30, s30, 4"); e("s_add_u32 s28, s28, s30")
            e("s_and_b32 s31, s31, 1"); e("s_lshl_b32 s31, s31, 5"); e("s_lshl_b32 s30, s17, 6"); e("s_add_u32 s31, s31, s30")
            e("s_mul_i32 s30, s17, 72"); e("s_add_u32 s30, s30, s27"); e("s_lshl_b32 s30, s30, 10"); e("s_add_u32 s30, s30, 0x%x" % OFF_PART)
            for jp in range(8):
                e("buffer_load_dwordx4 %s, v%d, s[8:11], s30 offen sc1" % (vr(R+4*jp,4), V_L16))
                if jp<7: e("s_add_u32 s30, s30, %d" % (S*D*2))
            so=80+4*sg
            e("s_mul_i32 s30, s31, 1152"); e("s_lshl_b32 s29, s28, 1"); e("s_add_u32 s%d, s30, s29" % so)
            e("s_add_u32 s%d, s%d, %d" % (so+1, so, 16*1152))
            e("s_add_u32 s30, s%d, 0x%x" % (so, OFF_HC))
            e("buffer_load_dwordx2 %s, v64, s[8:11], s30 offen" % vr(R+32,2))
            e("s_add_u32 s30, s%d, 0x%x" % (so+1, OFF_HC))
            e("buffer_load_dwordx2 %s, v64, s[8:11], s30 offen" % vr(R+34,2))
            e("s_lshl_b32 s30, s31, 2"); e("s_add_u32 s30, s30, 0x%x" % OFF_MEAN)
            e("buffer_load_dword v%d, v65, s[8:11], s30 offen" % (R+36))
            e("buffer_load_dword v%d, v65, s[8:11], s30 offen offset:64" % (R+37))
            e("buffer_load_dwordx2 %s, v66, s[36:39], s29 offen" % vr(R+38,2))
        def blk_sum(sg):
            R=80+40*sg; so=80+4*sg; a=208
            e("v_lshlrev_b32 v%d, 16, v%d" % (a+8, R+38)); e("v_and_b32 v%d, 0xffff0000, v%d" % (a+9, R+38))
            e("v_lshlrev_b32 v%d, 16, v%d" % (a+10, R+39)); e("v_and_b32 v%d, 0xffff0000, v%d" % (a+11, R+39))
            for jp in range(8):
                for i in range(4):
                    for hh in range(2):
                        c = (a+8+(i&1)*2+hh) if jp==0 else (a+2*i+hh)
                        e("v_dot2_f32_bf16 v%d, v%d, v%d, v%d" % (a+2*i+hh, R+4*jp+i, 68+hh, c))
            for i in range(4):
                for hh in range(2):
                    e("v_dot2_f32_bf16 v%d, v%d, v%d, v%d" % (a+2*i+hh, R+32+i, 68+hh, a+2*i+hh))
            for i in range(4):
                for hh in range(2):
                    e("v_add_f32 v%d, v%d, v%d" % (a+2*i+hh, a+2*i+hh, R+36+(i>>1)))
            for i in range(4): e("v_cvt_pk_bf16_f32 v%d, v%d, v%d" % (a+16+i, a+2*i, a+2*i+1))
            e("buffer_store_dwordx2 %s, v64, s[40:43], s%d offen" % (vr(a+16,2), so))
            e("buffer_store_dwordx2 %s, v64, s[40:43], s%d offen" % (vr(a+18,2), so+1))
        blk_loads(0)
        e("s_add_u32 s27, s27, 4")
        blk_loads(1)
        e("s_cmp_lg_u32 s18, 0")
        e("s_cbranch_scc1 %s_two" % name)
        e("s_add_u32 s27, s27, 4")
        blk_loads(2)
        e("s_waitcnt vmcnt(26)"); blk_sum(0)
        e("s_waitcnt vmcnt(15)"); blk_sum(1)
        e("s_waitcnt vmcnt(4)"); blk_sum(2)
        e("s_branch %s_loop" % name)
        A.label("%s_two" % name)
        e("s_waitcnt vmcnt(13)"); blk_sum(0)
        e("s_waitcnt vmcnt(2)"); blk_sum(1)
        e("s_branch %s_loop" % name)
        A.label("%s_done" % name)
    if dbg_time:
        if not fuse: stamp("stores_issued")
        e("s_waitcnt vmcnt(0)")
        stamp("end")
        e("s_waitcnt lgkmcnt(0)")
        e("s_mov_b32 s36, s4"); e("s_mov_b32 s37, s5"); e("s_mov_b32 s38, 0x%x" % WS_BYTES); e("s_mov_b32 s39, 0x20000")
        e("s_lshl_b32 s40, s2, 2"); e("s_add_u32 s40, s40, s18"); e("s_lshl_b32 s40, s40, 7"); e("s_add_u32 s40, s40, 0x4000000")
        e("v_mov_b32 v%d, 0" % (T+1))
        for i in range(len(stamps)):
            e("v_mov_b32 v%d, s%d" % (T, 44+2*i))
            e("buffer_store_dword v%d, v%d, s[36:39], s40 offen offset:%d" % (T, T+1, 4*i))
            e("s_nop 1")
        print("stamps:", stamps)
    A.label("%s_end" % name)
    e("s_endpgm")
    kd=KD_FMT.format(name=name, vgpr=256+NAGPR, sgpr=100, accum=256)
    return A.text(), kd, LDS_RSTD+512, 256
```

```python
import re
def apply_stamps(name, text, kid, enable):
    lines=text.split("\n"); out=[]; names=[]
    for ln in lines:
        m=re.match(r"\s*;@S (\S+)", ln)
        if m:
            if enable:
                nm=m.group(1)
                if nm not in names: names.append(nm)
                i=names.index(nm)
                out.append("  s_memrealtime s[%d:%d]" % (60+2*i, 61+2*i))
            continue
        if enable and ln.strip()=="s_endpgm" and not (out and out[-1].strip()==name+"_end:"):
            out.append("  s_branch %s_fin2" % name); continue
        out.append(ln)
    text="\n".join(out)
    if enable:
        n=len(names)
        text=text.replace("%s_end:\n" % name, "  s_branch %s_fin2\n%s_end:\n" % (name,name))
        fin="%s_fin2:\n  s_waitcnt vmcnt(0)\n  s_memrealtime s[%d:%d]\n  s_waitcnt lgkmcnt(0)\n" % (name, 60+2*n, 61+2*n)
        fin+="  s_mov_b64 exec, 1\n  v_lshrrev_b32 v2, 6, v0\n  s_lshl_b32 s58, s2, 2\n  v_add_u32 v2, s58, v2\n  v_lshlrev_b32 v2, 7, v2\n  s_mov_b32 s58, 0x%x\n" % (0x6000000+kid*0x40000)
        for i in range(n+1):
            fin+="  v_mov_b32 v3, s%d\n  buffer_store_dword v3, v2, s[8:11], s58 offen offset:%d\n  s_nop 1\n" % (60+2*i, 4*i)
        fin+="  s_endpgm\n"
        text+=fin
        names.append("end")
    return text, names
```

```python
from asmlib import *
from layout import *

def emit_swz_common(A, pitch, vbase=2):
    e=A.e
    V0,V1,VR=vbase,vbase+1,vbase+2
    t=vbase+3
    e("v_lshrrev_b32 v%d, 3, v1" % t)
    e("s_mov_b32 s40, %d" % pitch)
    e("v_mul_lo_u32 v%d, v%d, s40" % (t,t))
    e("v_bfe_u32 v%d, v1, 4, 1" % (t+1))
    e("v_lshlrev_b32 v%d, 1, v%d" % (t+1,t+1))
    e("v_and_b32 v%d, 7, v1" % (t+2))
    e("v_xor_b32 v%d, v%d, v%d" % (t+2,t+2,t+1))
    e("v_lshl_add_u32 v%d, v%d, 4, v%d" % (V0,t+2,t))
    e("v_xor_b32 v%d, 64, v%d" % (V1,V0))
    e("v_lshrrev_b32 v%d, 4, v1" % t)
    e("v_bfe_u32 v%d, v1, 2, 2" % (t+1))
    e("v_lshl_add_u32 v%d, v%d, 3, v%d" % (t+2,t,t+1))
    e("v_lshlrev_b32 v%d, 7, v%d" % (t+2,t+2))
    e("v_lshrrev_b32 v%d, 1, v%d" % (t+1,t+1))
    e("v_and_b32 v%d, 1, v%d" % (t,t))
    e("v_lshl_add_u32 v%d, v%d, 1, v%d" % (t,t,t+1))
    e("v_lshl_add_u32 v%d, v%d, 5, v%d" % (t+2,t,t+2))
    e("v_and_b32 v%d, 3, v1" % t)
    e("v_lshl_add_u32 v%d, v%d, 3, v%d" % (VR,t,t+2))
    return V0,V1,VR

def emit_swz_dma(A, V0, V1, srd, sSrc0, sSrc1, pitch, s_lds, ldsoff):
    e=A.e
    for i in range(4):
        src = sSrc0 if i<2 else sSrc1
        e("s_add_u32 m0, s%d, %d" % (s_lds, ldsoff+i*1024))
        if i&1: e("s_add_u32 s41, s%d, %d" % (src, 8*pitch))
        else: e("s_mov_b32 s41, s%d" % src)
        e("buffer_load_dwordx4 v%d, %s, s41 offen lds" % ((V0,V1)[i&1], srd))

def emit_swz_out(A, VR, s_lds, ldsoff, dests, vlane16, vt, flags=""):
    e=A.e
    for fbl in range(4):
        e("v_xor_b32 v%d, %d, v%d" % (vt+16+fbl, fbl<<5, VR))
        e("v_add_u32 v%d, s%d, v%d" % (vt+16+fbl, s_lds, vt+16+fbl))
    for fbl in range(4):
        e("ds_read_b64_tr_b16 %s, v%d offset:%d" % (vr(vt+fbl*4,2), vt+16+fbl, ldsoff))
        e("ds_read_b64_tr_b16 %s, v%d offset:%d" % (vr(vt+fbl*4+2,2), vt+16+fbl, ldsoff+512))
    for fbl in range(4):
        e("s_waitcnt lgkmcnt(%d)" % (6-2*fbl))
        e("buffer_store_dwordx4 %s, v%d, s[8:11], s%d offen %s" % (vr(vt+fbl*4,4), vlane16, dests[fbl], flags))

def emit_w1_role(A, wi_sgpr, flags=""):
    e=A.e
    V0,V1,VR=emit_swz_common(A, 9216)
    e("v_lshlrev_b32 v8, 4, v1")
    e("s_mul_hi_u32 s20, s%d, 0x%x" % (wi_sgpr, (2**32+35)//36))
    e("s_mul_i32 s21, s20, 36"); e("s_sub_u32 s21, s%d, s21" % wi_sgpr)
    e("s_lshl_b32 s19, s18, 13")
    e("s_mul_i32 s22, s20, %d" % (32*9216)); e("s_lshl_b32 s23, s21, 8"); e("s_add_u32 s22, s22, s23")
    for task in range(2):
        e("s_add_u32 s24, s22, %d" % (task*128))
        e("s_add_u32 s25, s24, %d" % (16*9216))
        emit_swz_dma(A,V0,V1,"s[12:15]",24,25,9216,19,task*4096)
    e("s_mul_hi_u32 s34, s20, 0x2aaaaaab"); e("s_mul_i32 s35, s34, 6"); e("s_sub_u32 s35, s20, s35")
    e("s_mul_i32 s34, s34, 12"); e("s_add_u32 s34, s34, s35")
    e("s_add_u32 s35, s20, 36")
    for task in range(2):
        for fbl in range(4):
            e("s_lshl_b32 s26, s21, 3"); e("s_add_u32 s26, s26, %d" % (4*task+fbl))
            e("s_mul_hi_u32 s27, s26, 0x55555556")
            e("s_mul_i32 s28, s27, 3"); e("s_sub_u32 s28, s26, s28")
            e("s_mul_hi_u32 s26, s27, 0x55555556")
            e("s_mul_i32 s29, s26, 3"); e("s_sub_u32 s29, s27, s29")
            e("s_mul_i32 s27, s29, 6"); e("s_add_u32 s27, s27, s34")
            e("s_cmp_eq_u32 s29, 2"); e("s_cselect_b32 s27, s35, s27")
            e("s_mul_i32 s27, s27, 3"); e("s_add_u32 s27, s27, s28"); e("s_lshl_b32 s27, s27, 10")
            e("s_mul_i32 s26, s26, 165888"); e("s_add_u32 s27, s27, s26")
            e("s_add_u32 s%d, s27, 0x%x" % (30+fbl, OFF_W1S))
        e("s_waitcnt vmcnt(4)")
        emit_swz_out(A,VR,19,task*4096,[30,31,32,33],8,16,flags)

def w1_dest_index(g, ks, mb):
    jw=g//3; c=g%3
    t = 36+ks if c==2 else (ks//6)*12 + 6*c + ks%6
    return jw*162 + t*3 + mb

def w2_dest_index(j, ks, cb):
    w=cb//9; cbw=cb%9; cc=cbw//3; mb=cbw%3
    kap=ks//6; ksl=ks%6
    return (j*4+w)*162 + ((kap*3+cc)*6+ksl)*3+mb

def emit_w2_role(A, wi_sgpr, flags=""):
    e=A.e
    V0,V1,VR=emit_swz_common(A, 1152)
    e("v_lshlrev_b32 v8, 4, v1")
    e("s_mul_hi_u32 s20, s%d, 0x%x" % (wi_sgpr, (2**32+80)//81))
    e("s_mul_i32 s21, s20, 81"); e("s_sub_u32 s21, s%d, s21" % wi_sgpr)
    e("s_mul_hi_u32 s22, s21, 0x%x" % ((2**32+8)//9))
    e("s_mul_i32 s23, s22, 9"); e("s_sub_u32 s23, s21, s23")
    e("s_lshl_b32 s19, s18, 13")
    for task in range(2):
        for h in range(2):
            e("s_lshl_b32 s26, s22, 6"); e("s_add_u32 s26, s26, %d" % (32*task+16*h))
            e("s_mul_hi_u32 s27, s26, 0x%x" % ((2**32+191)//192))
            e("s_mul_i32 s28, s27, 192"); e("s_sub_u32 s28, s26, s28")
            e("s_mul_hi_u32 s29, s28, 0x%x" % ((2**32+47)//48))
            e("s_mul_i32 s34, s29, 48"); e("s_sub_u32 s28, s28, s34")
            e("s_mul_i32 s29, s29, 144"); e("s_mul_i32 s27, s27, 48")
            e("s_add_u32 s28, s28, s29"); e("s_add_u32 s28, s28, s27")
            e("s_mul_i32 s27, s20, 576"); e("s_add_u32 s28, s28, s27")
            e("s_mul_i32 s28, s28, 1152"); e("s_lshl_b32 s27, s23, 7"); e("s_add_u32 s%d, s28, s27" % (24+h))
        emit_swz_dma(A,V0,V1,"s[12:15]",24,25,1152,19,task*4096)
    for task in range(2):
        e("s_lshl_b32 s26, s22, 1"); e("s_add_u32 s26, s26, %d" % task)
        e("s_mul_hi_u32 s27, s26, 0x2aaaaaab")
        e("s_mul_i32 s28, s27, 6"); e("s_sub_u32 s28, s26, s28")
        e("s_mul_i32 s27, s27, 54"); e("s_mul_i32 s28, s28, 3"); e("s_add_u32 s35, s27, s28")
        for fbl in range(4):
            e("s_lshl_b32 s26, s23, 2"); e("s_add_u32 s26, s26, %d" % fbl)
            e("s_mul_hi_u32 s27, s26, 0x%x" % ((2**32+8)//9))
            e("s_mul_i32 s28, s27, 9"); e("s_sub_u32 s28, s26, s28")
            e("s_mul_hi_u32 s29, s28, 0x55555556")
            e("s_mul_i32 s34, s29, 3"); e("s_sub_u32 s28, s28, s34")
            e("s_mul_i32 s29, s29, 18"); e("s_add_u32 s28, s28, s29"); e("s_add_u32 s28, s28, s35")
            e("s_lshl_b32 s29, s20, 2"); e("s_add_u32 s27, s27, s29"); e("s_mul_i32 s27, s27, 162")
            e("s_add_u32 s27, s27, s28"); e("s_lshl_b32 s27, s27, 10")
            e("s_add_u32 s%d, s27, 0x%x" % (30+fbl, OFF_W2S))
        e("s_waitcnt vmcnt(4)")
        emit_swz_out(A,VR,19,task*4096,[30,31,32,33],8,16,flags)

def emit_w1_role2(A, wg_sgpr, flags=""):
    e=A.e
    e("s_mul_hi_u32 s20, s%d, 0x%x" % (wg_sgpr, (2**32+8)//9))
    e("s_mul_i32 s21, s20, 9"); e("s_sub_u32 s21, s%d, s21" % wg_sgpr)
    e("s_and_b32 s22, s18, 1"); e("s_lshl_b32 s22, s22, 3")
    e("v_xor_b32 v2, s22, v1")
    for i in range(4):
        e("v_xor_b32 v%d, %d, v2" % (3+i, i<<1)); e("v_lshlrev_b32 v%d, 4, v%d" % (3+i,3+i))
    e("s_lshl_b32 s23, s20, 5"); e("s_lshl_b32 s24, s18, 3"); e("s_add_u32 s23, s23, s24"); e("s_mul_i32 s23, s23, 9216")
    e("s_lshl_b32 s24, s21, 10"); e("s_add_u32 s23, s23, s24")
    e("s_lshl_b32 s19, s18, 13")
    for i in range(8):
        e("s_add_u32 m0, s19, %d" % (i*1024))
        if i: e("s_add_u32 s23, s23, 9216")
        else: e("s_nop 0")
        e("buffer_load_dwordx4 v%d, s[12:15], s23 offen lds" % (3+(i&3)))
    e("v_lshrrev_b32 v8, 4, v1")
    e("v_bfe_u32 v9, v1, 2, 2")
    e("v_lshl_add_u32 v10, v8, 3, v9")
    e("v_lshlrev_b32 v10, 10, v10")
    e("v_and_b32 v8, 1, v8"); e("v_lshl_add_u32 v8, v8, 2, v9")
    e("v_lshl_add_u32 v10, v8, 5, v10")
    e("v_and_b32 v8, 3, v1"); e("v_lshl_add_u32 v10, v8, 3, v10")
    e("v_lshlrev_b32 v11, 4, v1")
    e("s_lshl_b32 s24, s18, 8")
    e("v_xor_b32 v10, s24, v10")
    for k in range(8): e("v_xor_b32 v%d, %d, v10" % (12+k, k<<5))
    e("s_mul_hi_u32 s34, s20, 0x2aaaaaab"); e("s_mul_i32 s35, s34, 6"); e("s_sub_u32 s35, s20, s35")
    e("s_mul_i32 s34, s34, 12"); e("s_add_u32 s34, s34, s35"); e("s_add_u32 s35, s20, 36")
    for k in range(8):
        e("s_lshl_b32 s26, s21, 5"); e("s_lshl_b32 s27, s18, 3"); e("s_add_u32 s26, s26, s27"); e("s_add_u32 s26, s26, %d" % k)
        e("s_mul_hi_u32 s27, s26, 0x55555556")
        e("s_mul_i32 s28, s27, 3"); e("s_sub_u32 s28, s26, s28")
        e("s_mul_hi_u32 s26, s27, 0x55555556")
        e("s_mul_i32 s29, s26, 3"); e("s_sub_u32 s29, s27, s29")
        e("s_mul_i32 s27, s29, 6"); e("s_add_u32 s27, s27, s34")
        e("s_cmp_eq_u32 s29, 2"); e("s_cselect_b32 s27, s35, s27")
        e("s_mul_i32 s27, s27, 3"); e("s_add_u32 s27, s27, s28"); e("s_lshl_b32 s27, s27, 10")
        e("s_mul_i32 s26, s26, 165888"); e("s_add_u32 s27, s27, s26")
        e("s_add_u32 s%d, s27, 0x%x" % (46+k, OFF_W1S))
    e("s_waitcnt vmcnt(0)")
    e("s_barrier")
    def rd(k):
        e("ds_read_b64_tr_b16 %s, v%d" % (vr(24+k*4,2), 12+k))
        e("ds_read_b64_tr_b16 %s, v%d offset:4096" % (vr(24+k*4+2,2), 12+k))
    for k in range(7): rd(k)
    for k in range(8):
        e("s_waitcnt lgkmcnt(%d)" % (12 if k==0 else 14-2*k))
        e("buffer_store_dwordx4 %s, v11, s[8:11], s%d offen %s" % (vr(24+k*4,4), 46+k, flags))
        if k==0: rd(7)

def emit_w2_role2(A, wg_sgpr, flags=""):
    e=A.e
    e("s_mul_hi_u32 s20, s%d, 0x%x" % (wg_sgpr, (2**32+17)//18))
    e("s_mul_i32 s21, s20, 18"); e("s_sub_u32 s21, s%d, s21" % wg_sgpr)
    for h in range(2):
        e("s_lshl_b32 s26, s21, 5"); e("s_add_u32 s26, s26, %d" % (16*h))
        e("s_mul_hi_u32 s27, s26, 0x%x" % ((2**32+191)//192))
        e("s_mul_i32 s28, s27, 192"); e("s_sub_u32 s28, s26, s28")
        e("s_mul_hi_u32 s29, s28, 0x%x" % ((2**32+47)//48))
        e("s_mul_i32 s34, s29, 48"); e("s_sub_u32 s28, s28, s34")
        e("s_mul_i32 s29, s29, 144"); e("s_mul_i32 s27, s27, 48")
        e("s_add_u32 s28, s28, s29"); e("s_add_u32 s28, s28, s27")
        e("s_mul_i32 s27, s20, 576"); e("s_add_u32 s28, s28, s27")
        e("s_mul_i32 s%d, s28, 1152" % (24+h))
    e("v_lshlrev_b32 v11, 4, v1")
    e("s_mul_i32 s22, s18, 9")
    e("s_cmp_ge_u32 s18, 2")
    e("s_cselect_b32 s23, s25, s24"); e("s_cselect_b32 s26, 18, 0")
    e("s_sub_u32 s26, s22, s26"); e("s_lshl_b32 s26, s26, 10"); e("s_add_u32 s23, s23, s26")
    e("s_lshl_b32 s19, s22, 10")
    for i in range(9):
        e("s_add_u32 m0, s19, %d" % (i*1024))
        if i: e("s_add_u32 s23, s23, 1024")
        else: e("s_nop 0")
        e("buffer_load_dwordx4 v11, s[12:15], s23 offen lds")
    e("v_lshrrev_b32 v8, 4, v1"); e("v_bfe_u32 v9, v1, 2, 2"); e("v_lshl_add_u32 v10, v8, 3, v9")
    e("s_movk_i32 s26, 1152"); e("v_mul_lo_u32 v10, v10, s26")
    e("v_and_b32 v8, 3, v1"); e("v_lshl_add_u32 v10, v8, 3, v10")
    e("s_mul_i32 s26, s18, %d" % (9*32)); e("v_add_u32 v10, s26, v10")
    e("s_mul_hi_u32 s27, s21, 0x2aaaaaab"); e("s_mul_i32 s28, s27, 6"); e("s_sub_u32 s28, s21, s28")
    e("s_mul_i32 s27, s27, 54"); e("s_mul_i32 s28, s28, 3"); e("s_add_u32 s27, s27, s28")
    e("s_lshl_b32 s28, s20, 2"); e("s_add_u32 s28, s28, s18"); e("s_mul_i32 s28, s28, 162"); e("s_add_u32 s27, s27, s28")
    e("s_lshl_b32 s27, s27, 10"); e("s_add_u32 s27, s27, 0x%x" % OFF_W2S)
    e("s_waitcnt vmcnt(0)")
    e("s_barrier")
    for k in range(9):
        if k==7: e("s_waitcnt lgkmcnt(8)")
        e("ds_read_b64_tr_b16 %s, v10 offset:%d" % (vr(24+k*4,2), k*32))
        e("ds_read_b64_tr_b16 %s, v10 offset:%d" % (vr(24+k*4+2,2), k*32+4*1152))
    for k in range(9):
        e("s_waitcnt lgkmcnt(%d)" % min(15,16-2*k) if k>0 else "s_waitcnt lgkmcnt(14)")
        e("s_add_u32 s28, s27, %d" % (((k//3)*18+(k%3))*1024))
        e("buffer_store_dwordx4 %s, v11, s[8:11], s28 offen %s" % (vr(24+k*4,4), flags))

def emit_wt_role2(A, wg_sgpr, flags=""):
    e=A.e
    e("s_lshr_b32 s20, s%d, 1" % wg_sgpr)
    e("s_and_b32 s21, s%d, 1" % wg_sgpr)
    e("s_cmp_eq_u32 s21, 1")
    e("s_cselect_b32 s12, s24, s12"); e("s_cselect_b32 s13, s25, s13")
    e("v_lshlrev_b32 v11, 4, v1")
    e("s_mul_i32 s23, s20, 36992"); e("s_lshl_b32 s22, s18, 10"); e("s_add_u32 s23, s23, s22")
    for i in range(10):
        if i==9:
            e("s_cmp_lg_u32 s18, 0"); e("s_cbranch_scc1 WT2_skip")
        e("s_add_u32 m0, s22, %d" % (i*4096))
        if i: e("s_add_u32 s23, s23, 4096")
        else: e("s_nop 0")
        e("buffer_load_dwordx4 v11, s[12:15], s23 offen lds")
    A.label("WT2_skip")
    e("v_and_b32 v2, 15, v1"); e("v_lshrrev_b32 v3, 4, v1")
    e("s_movk_i32 s26, 578"); e("v_mul_lo_u32 v4, v2, s26")
    e("s_mul_i32 s26, s18, 72"); e("v_add_u32 v5, s26, v3")
    e("v_lshl_add_u32 v6, v5, 1, v4")
    e("v_cmp_eq_u32 vcc, 0, v5"); e("v_add_u32 v7, 576, v4"); e("s_nop 0")
    e("v_cndmask_b32 v7, v6, v7, vcc")
    e("v_lshlrev_b32 v8, 13, v5"); e("v_lshl_add_u32 v8, v2, 3, v8")
    e("s_lshr_b32 s26, s20, 3"); e("s_lshl_b32 s26, s26, 11"); e("s_lshl_b32 s27, s21, 10"); e("s_add_u32 s26, s26, s27")
    e("s_and_b32 s27, s20, 1"); e("s_lshl_b32 s27, s27, 9"); e("s_add_u32 s26, s26, s27")
    e("s_bfe_u32 s27, s20, 0x20001"); e("s_lshl_b32 s27, s27, 7"); e("s_add_u32 s26, s26, s27")
    e("s_add_u32 s26, s26, 0x%x" % OFF_WT)
    e("s_waitcnt vmcnt(0)")
    e("s_barrier")
    def rd(it):
        for nb in range(2):
            for rr in range(2):
                e("ds_read_u16 v%d, v%d offset:%d" % (16+(it%3)*4+nb*2+rr, 7 if it==0 else 6, it*8+(16*nb+32*rr)*578))
    rd(0); rd(1)
    for it in range(18):
        if it+2<18: rd(it+2)
        e("s_waitcnt lgkmcnt(%d)" % (4*min(2,17-it)))
        b=16+(it%3)*4; o=32+(it&1)*2
        e("v_lshl_or_b32 v%d, v%d, 16, v%d" % (o, b+1, b))
        e("v_lshl_or_b32 v%d, v%d, 16, v%d" % (o+1, b+3, b+2))
        e("buffer_store_dwordx2 %s, v8, s[8:11], s26 offen %s" % (vr(o,2), flags))
        e("s_add_u32 s26, s26, %d" % (4*8192))
```

```python
import sys
sys.path.insert(0,"gen")
from k1 import gen_k1
from k2 import gen_k2
from k3 import gen_k3
from k4b import gen_k4
from k4 import gen_k5
HEADER=open("sequential_preLN__spectral_gfnet__dense_activation_gelu__prompt.s.ref").read().split("; Override")[0]
def build(path, k4opts=None, which=("k1","k2","k3","k4","k5"), k1opts=None,k2opts=None,k3opts=None,stamps=False, istamps=False):
    parts=[]
    if "k1" in which: parts.append(("k1_kernel",)+gen_k1(**(k1opts or {})))
    if "k2" in which: parts.append(("k2_kernel",)+gen_k2(**(k2opts or {})))
    if "k3" in which: parts.append(("k3_kernel",)+gen_k3(**(k3opts or {})))
    if "k4" in which: parts.append(("k4_kernel",)+gen_k4(**(k4opts or {})))
    if "k5" in which and not (k4opts or {}).get("fuse"):
        t,kd,l=gen_k5(); parts.append(("k5_kernel",t,kd,l,576))
    from stamp import apply_stamps
    import re as _re
    np2=[]; allnames={}
    for kid,(n,t,kd,l,g) in enumerate(parts):
        t,names=apply_stamps(n,t,kid,istamps and n in ("k1_kernel","k2_kernel","k3_kernel"))
        if istamps and n in ("k1_kernel","k2_kernel","k3_kernel"):
            kd=_re.sub(r"next_free_sgpr \d+","next_free_sgpr 100",kd); print(n,names)
        np2.append((n,t,kd,l,g))
    parts=np2
    if stamps:
        np_=[]
        for kid,(n,t,kd,l,g) in enumerate(parts):
            lines=t.split("\n")
            out=[]
            started=False
            for ln in lines:
                if ln.strip()=="s_endpgm":
                    out.append("  s_branch %s_fin" % n) if not (out and out[-1].strip()==n+"_end:") else out.append(ln)
                    continue
                out.append(ln)
                if (not started) and ln.strip().startswith("s_cbranch_scc1 %s_end" % n):
                    out.append("  s_memrealtime s[90:91]"); started=True
            txt="\n".join(out)
            txt=txt.replace("%s_end:\n" % n, "  s_branch %s_fin\n%s_end:\n" % (n,n))
            txt+="""%s_fin:
  s_waitcnt vmcnt(0)
  s_memrealtime s[92:93]
  s_waitcnt lgkmcnt(0)
  v_lshrrev_b32 v2, 6, v0
  v_and_b32 v3, 63, v0
  s_lshl_b32 s94, s2, 2
  v_add_u32 v2, s94, v2
  v_lshlrev_b32 v2, 3, v2
  v_mov_b32 v4, s90
  v_mov_b32 v5, s92
  s_mov_b32 s94, 0x%x
  v_cmp_eq_u32 vcc, 0, v3
  s_and_saveexec_b64 s[96:97], vcc
  buffer_store_dwordx2 v[4:5], v2, s[8:11], s94 offen
  s_endpgm
""" % (n, 0x5000000+kid*0x10000)
            import re
            kd=re.sub(r"next_free_sgpr \d+","next_free_sgpr 100",kd)
            np_.append((n,txt,kd,l,g))
        parts=np_
    hdr=HEADER+"".join("; @launch kernel=%s grid=(%d,1,1) block=(256,1,1) lds=%d\n" % (n,g,l) for n,t,kd,l,g in parts)
    s=hdr+'.amdgcn_target "amdgcn-amd-amdhsa--gfx950"\n.text\n'+"".join(p[1] for p in parts)+'text_end:\n  s_endpgm\n'+'.section .rodata,"a"\n'+"".join(p[2] for p in parts)
    open(path,"w").write(s)
if __name__=="__main__":
    opts=eval("dict(%s)" % (sys.argv[2] if len(sys.argv)>2 else ""))
    build(sys.argv[1], **opts)
```

```python
from asmlib import *
from layout import *
from swz import *
import math
NSW=144
NMAIN=192

def gen_k3(name="k3_kernel", flags="", touch=False, swzflags="sc1", w2=False, cpf=True, w1touch=False, exp=None):
    A=Asm(); e=A.e
    A.raw(".globl %s\n.p2align 8\n.type %s,@function\n%s:" % (name,name,name))
    nsw=NSW if w2 else 0
    e("s_cmp_ge_u32 s2, %d" % (NMAIN+nsw))
    e("s_cbranch_scc1 %s_end" % name)
    e(";@S start")
    e("s_load_dwordx2 s[4:5], s[0:1], 80")
    e("s_load_dwordx2 s[6:7], s[0:1], 0")
    e("s_load_dwordx2 s[36:37], s[0:1], 48")
    e("v_and_b32 v1, 63, v0")
    e("v_lshrrev_b32 v2, 6, v0")
    e("s_nop 0")
    e("v_readfirstlane_b32 s18, v2")
    if w2:
        e("s_cmp_ge_u32 s2, %d" % NMAIN)
        e("s_cbranch_scc1 %s_swz" % name)
    L15=2; Q=3; VD0=4; VD1=5; RA=6
    DL=14; T2=15; BE=16; XO=17; MO=18
    T=19
    GEN=24
    AFR=44
    BFR=116
    ACC=148
    XR=180
    MN=196
    e("s_and_b32 s16, s2, 7"); e("s_lshr_b32 s17, s2, 3")
    e("s_mul_hi_u32 s19, s17, 0x2aaaaaab")
    e("s_mul_i32 s20, s19, 6"); e("s_sub_u32 s20, s17, s20")
    e("s_lshl_b32 s19, s19, 3"); e("s_add_u32 s19, s19, s16")
    e("v_and_b32 v%d, 15, v1" % L15)
    e("v_lshrrev_b32 v%d, 4, v1" % Q)
    e("v_bfe_u32 v%d, v1, 3, 1" % T)
    e("v_lshl_add_u32 v%d, v%d, 2, v%d" % (T, Q, T))
    e("v_lshlrev_b32 v%d, 12, v%d" % (T, T))
    e("v_and_b32 v%d, 1, v%d" % (T+1, Q))
    e("v_lshlrev_b32 v%d, 1, v%d" % (T+1, T+1))
    e("v_and_b32 v%d, 7, v1" % (T+2))
    e("v_xor_b32 v%d, v%d, v%d" % (T+2, T+2, T+1))
    e("v_lshl_add_u32 v%d, v%d, 4, v%d" % (VD0, T+2, T))
    e("v_xor_b32 v%d, 64, v%d" % (VD1, VD0))
    e("s_waitcnt lgkmcnt(0)")
    e(";@S karg")
    e("s_mov_b32 s8, s4"); e("s_mov_b32 s9, s5"); e("s_mov_b32 s10, 0x%x" % WS_BYTES); e("s_mov_b32 s11, 0x20000")
    e("s_mov_b32 s12, s6"); e("s_mov_b32 s13, s7"); e("s_mov_b32 s14, %d" % (S*D*2)); e("s_mov_b32 s15, 0x20000")
    e("s_mul_i32 s21, s18, 18")
    e("s_cmp_ge_u32 s18, 2")
    e("s_cselect_b32 s22, 36, 0")
    e("s_cselect_b32 s23, 2, 0")
    e("s_sub_u32 s22, s21, s22"); e("s_lshl_b32 s22, s22, 4"); e("s_add_u32 s22, s22, s23"); e("s_lshl_b32 s22, s22, 12")
    e("s_lshl_b32 s23, s19, 7"); e("s_add_u32 s22, s22, s23"); e("s_add_u32 s22, s22, 0x%x" % OFF_ZP)
    e("s_lshl_b32 s23, s21, 10")
    for n in range(18):
        e("s_add_u32 m0, s23, %d" % (n*1024))
        if n>0: e("s_add_u32 s22, s22, %d" % (16*4096))
        else: e("s_nop 0")
        e("buffer_load_dwordx4 v%d, s[8:11], s22 offen lds" % (VD0,VD1)[n&1])
    e("s_cmp_eq_u32 s18, 3")
    e("s_cbranch_scc1 %s_w3" % name)
    e("s_mul_i32 s24, s20, 48"); e("s_lshl_b32 s25, s18, 4"); e("s_add_u32 s24, s24, s25")
    e("v_lshrrev_b32 v%d, 2, v%d" % (T, L15))
    e("v_lshl_add_u32 v%d, v%d, 3, v%d" % (T+1, Q, T))
    e("v_lshlrev_b32 v%d, 7, v%d" % (T+1, T+1))
    e("v_lshrrev_b32 v%d, 1, v%d" % (T, T))
    e("v_and_b32 v%d, 1, v%d" % (T+2, Q))
    e("v_lshl_add_u32 v%d, v%d, 1, v%d" % (T, T+2, T))
    e("v_lshl_add_u32 v%d, v%d, 5, v%d" % (T+1, T, T+1))
    e("v_and_b32 v%d, 3, v%d" % (T, L15))
    e("v_lshl_add_u32 v%d, v%d, 3, v%d" % (T+1, T, T+1))
    for nb in range(4):
        e("v_xor_b32 v%d, %d, v%d" % (RA+nb, nb<<5, T+1))
        e("v_add_u32 v%d, 0x10000, v%d" % (RA+4+nb, RA+nb))
    e("v_add_u32 v%d, s24, v%d" % (T, L15))
    e("v_and_b32 v%d, 1, v%d" % (T+3, T))
    e("v_cvt_f32_u32 v%d, v%d" % (T, T))
    e("v_mul_f32 v%d, %s, v%d" % (DL, fhex(1.0/576.0), T))
    e("v_lshlrev_b32 v%d, 31, v%d" % (T+3, T+3))
    e("v_or_b32 v%d, 0.5, v%d" % (T+3, T+3))
    e("v_mul_f32 v%d, %s, v%d" % (T, fhex(32.0), DL))
    e("v_fract_f32 v%d, v%d" % (T, T))
    e("v_cos_f32 v%d, v%d" % (T, T))
    e("v_lshlrev_b32 v%d, 3, v%d" % (T+1, Q))
    e("v_cvt_f32_u32 v%d, v%d" % (T+1, T+1))
    e("v_add_f32 v%d, v%d, v%d" % (T2, T, T))
    e("v_mul_f32 v%d, v%d, v%d" % (BE, DL, T+1))
    e("v_add_f32 v%d, %s, v%d" % (T+2, fhex(-0.25), BE))
    G=[GEN,GEN+8]
    def pack(t,g,patch=False):
        for j in range(4):
            a=g+2*j
            if patch and j==0:
                e("v_cmp_eq_u32 vcc, 0, v%d" % Q); e("s_nop 1")
                e("v_cndmask_b32 v40, v%d, v%d, vcc" % (g, T+3))
                a=None
                e("v_cvt_pk_bf16_f32 v%d, v40, v%d" % (AFR+t*4, g+1))
            else:
                e("v_cvt_pk_bf16_f32 v%d, v%d, v%d" % (AFR+t*4+j, a, a+1))
    for seq in range(2):
        for st in range(2):
            g=G[st]
            for i in range(8):
                kofs=32*st+2*(i>>1)+seq
                base = BE if (i&1)==0 else T+2
                if kofs==0: e("v_cos_f32 v%d, v%d" % (g+i, base))
                else: e("v_fmamk_f32 v%d, v%d, %s, v%d" % (g+i, DL, fhex(float(kofs)), base))
            for i in range(8):
                kofs=32*st+2*(i>>1)+seq
                if kofs: e("v_cos_f32 v%d, v%d" % (g+i, g+i))
            e("s_nop 0")
            pack(seq*9+st, g, patch=(seq==0 and st==0))
        for st in range(2,9):
            g=G[st&1]; gp=G[(st-1)&1]
            for i in range(8): e("v_fma_f32 v%d, v%d, v%d, -v%d" % (g+i, T2, gp+i, g+i))
            pack(seq*9+st,g)
    e("s_movk_i32 s25, 1152")
    e("v_mul_lo_u32 v%d, v%d, s25" % (XO, L15))
    e("v_lshl_add_u32 v%d, v%d, 3, v%d" % (XO, Q, XO))
    e("s_mul_i32 s26, s19, %d" % (64*1152)); e("s_lshl_b32 s27, s24, 1"); e("s_add_u32 s26, s26, s27")
    for nb in range(4):
        e("s_add_u32 s27, s26, %d" % (nb*16*1152))
        e("buffer_load_dwordx2 %s, v%d, s[12:15], s27 offen" % (vr(XR+nb*4,2), XO))
        e("buffer_load_dwordx2 %s, v%d, s[12:15], s27 offen offset:576" % (vr(XR+nb*4+2,2), XO))
    e("v_lshlrev_b32 v%d, 2, v%d" % (MO, L15))
    e("s_lshl_b32 s27, s19, 8"); e("s_add_u32 s27, s27, 0x%x" % OFF_MEAN)
    for nb in range(4):
        e("buffer_load_dword v%d, v%d, s[8:11], s27 offen offset:%d" % (MN+nb, MO, nb*64))
    e("s_waitcnt vmcnt(12)")
    e(";@S x_arr")
    e("s_barrier")
    def rdU(u):
        t=u>>1; h=u&1
        for nb in (2*h,2*h+1):
            v=RA+nb if t<16 else RA+4+nb
            off=(t*4096) if t<16 else (t-16)*4096
            b=BFR+(u&3)*8+(nb&1)*4
            e("ds_read_b64_tr_b16 %s, v%d offset:%d" % (vr(b,2), v, off))
            e("ds_read_b64_tr_b16 %s, v%d offset:%d" % (vr(b+2,2), v, off+512))
    for u in range(3): rdU(u)
    for u in range(36):
        t=u>>1; h=u&1; par=t//9
        left=min(35,u+2)-u
        if exp!="nolds" or u<3: e("s_waitcnt lgkmcnt(%d)" % (4*left if exp!="nolds" else 0))
        for nb in (2*h,2*h+1):
            d=vr(ACC+par*16+nb*4,4)
            if exp!="nomfma": e("v_mfma_f32_16x16x32_bf16 %s, %s, %s, %s" % (d, vr(AFR+t*4,4), vr(BFR+(u&3)*8+(nb&1)*4,4), "0" if t%9==0 else d))
        if u+3<36 and exp!="nolds": rdU(u+3)
    sc=2.0/(2048.0*576.0)
    e("s_mov_b32 s28, %s" % fhex(sc))
    e("s_add_u32 s26, s26, 0x%x" % OFF_HC)
    e("s_waitcnt vmcnt(0)")
    e("s_nop 4")
    for nb in range(4):
        E=ACC+nb*4; O=ACC+16+nb*4
        for half in range(2):
            xr=XR+nb*4+half*2
            t0=24
            e("v_lshlrev_b32 v%d, 16, v%d" % (t0, xr)); e("v_and_b32 v%d, 0xffff0000, v%d" % (t0+1, xr))
            e("v_lshlrev_b32 v%d, 16, v%d" % (t0+2, xr+1)); e("v_and_b32 v%d, 0xffff0000, v%d" % (t0+3, xr+1))
            for r in range(4): e("v_sub_f32 v%d, v%d, v%d" % (t0+r, t0+r, MN+nb))
            for r in range(4):
                if half==0: e("v_add_f32 v%d, v%d, v%d" % (t0+4+r, E+r, O+r))
                else: e("v_sub_f32 v%d, v%d, v%d" % (t0+4+r, E+r, O+r))
            for r in range(4): e("v_fma_f32 v%d, v%d, s28, v%d" % (t0+r, t0+4+r, t0+r))
            o=32+((nb*2+half)&1)*2
            e("v_cvt_pk_bf16_f32 v%d, v%d, v%d" % (o, t0, t0+1))
            e("v_cvt_pk_bf16_f32 v%d, v%d, v%d" % (o+1, t0+2, t0+3))
            e("s_add_u32 s27, s26, %d" % (nb*16*1152))
            e("buffer_store_dwordx2 %s, v%d, s[8:11], s27 offen offset:%d %s" % (vr(o,2), XO, half*576, flags))
    e("s_endpgm")
    A.label("%s_w3" % name)
    if cpf:
        e("s_getpc_b64 s[40:41]")
        A.label("%s_pc1" % name)
        e("s_add_u32 s40, s40, k4_kernel - %s_pc1" % name); e("s_addc_u32 s41, s41, 0")
        e("s_and_b32 s42, s17, 3"); e("s_lshl_b32 s42, s42, 13")
        e("v_lshlrev_b32 v30, 7, v1"); e("v_add_u32 v30, s42, v30")
        e("v_min_u32 v30, text_end - k4_kernel - 4, v30")
        e("global_load_dword v31, v30, s[40:41]")
    if w1touch:
        e("s_mul_i32 s24, s17, 144")
        e("v_add_u32 v32, s24, v1")
        for i in range(3):
            if i: e("v_add_u32 v32, 64, v32")
            e("v_min_u32 v33, 3455, v32")
            e("v_mul_u32_u24 v34, 0x%x, v33" % ((2**22+431)//432)); e("v_lshrrev_b32 v34, 22, v34")
            e("v_mul_u32_u24 v35, 432, v34"); e("v_sub_u32 v35, v33, v35")
            e("s_mov_b32 s25, 165888"); e("v_mul_lo_u32 v34, v34, s25"); e("v_lshl_add_u32 v34, v35, 7, v34")
            e("s_and_b32 s26, s16, 3"); e("s_mul_i32 s26, s26, %d" % (2*663552)); e("s_add_u32 s26, s26, 0x%x" % OFF_W1S)
            e("buffer_load_dword v%d, v34, s[8:11], s26 offen" % (36+i))
    e("s_waitcnt vmcnt(%d)" % ((1 if cpf else 0)+(3 if w1touch else 0)))
    e("s_barrier")
    if touch:
        e("s_and_b32 s24, s16, 3"); e("s_mul_i32 s24, s24, %d" % (2*663552)); e("s_mul_i32 s25, s17, %d" % (432*128)); e("s_add_u32 s24, s24, s25"); e("s_add_u32 s24, s24, 0x%x" % OFF_W2S)
        e("v_lshlrev_b32 v30, 7, v1")
        for i in range(7):
            if i==6:
                e("v_min_u32 v31, 47, v1"); e("v_lshlrev_b32 v30, 7, v31")
            e("buffer_load_dword v%d, v30, s[8:11], s24 offen" % (40+i))
            e("s_add_u32 s24, s24, 8192")
    if w2:
        e("s_endpgm")
        A.label("%s_swz" % name)
        e("s_sub_u32 s16, s2, %d" % NMAIN)
        e("s_waitcnt lgkmcnt(0)")
        e("s_mov_b32 s8, s4"); e("s_mov_b32 s9, s5"); e("s_mov_b32 s10, 0x%x" % WS_BYTES); e("s_mov_b32 s11, 0x20000")
        e("s_mov_b32 s12, s36"); e("s_mov_b32 s13, s37"); e("s_mov_b32 s14, %d" % (D*F*2)); e("s_mov_b32 s15, 0x20000")
        emit_w2_role2(A,16,swzflags)
    A.label("%s_end" % name)
    e("s_endpgm")
    kd=KD_FMT.format(name=name, vgpr=200, sgpr=48, accum=200)
    return A.text(), kd, 73728, NMAIN+nsw

if __name__=="__main__":
    import sys
    sys.path.insert(0,".")
    from k1 import gen_k1
    from k2 import gen_k2
    parts=[("k1_kernel",)+gen_k1(), ("k2_kernel",)+gen_k2(), ("k3_kernel",)+gen_k3()]
    hdr="".join("; @launch kernel=%s grid=(%d,1,1) block=(256,1,1) lds=%d\n" % (n,g,l) for n,t,kd,l,g in parts)
    s=hdr+'.amdgcn_target "amdgcn-amd-amdhsa--gfx950"\n.text\n'+"".join(p[1] for p in parts)+'.section .rodata,"a"\n'+"".join(p[2] for p in parts)
    open(sys.argv[1],"w").write(s)
```

```python
from asmlib import *
from layout import *
import math

def gen_k4(name="k4_kernel", P=5, P0=2, store_flags="", dbg_time=False, warm=False, gelu_end=89, gelu_start=30, stage=True, mapA='B', ext=True, PD=10, PD0=None, ldflags='sc1', fuse=False, spin=4000, gfree=(51,71,90), nostores=False, stamp_steps=(0,12,24,36,54,72,90)):
    A=Asm(); e=A.e
    V_LANE=1; V_L16=2
    V_AE,V_AO,V_AE8,V_AO8,V_HE,V_HO,V_HE8,V_HO8 = 3,4,5,6,7,8,9,10
    V_WA=11; V_GE,V_GO,V_GE8,V_GO8 = 14,15,16,17
    V_RSTD=18; V_BIAS=22; V_BRAW=34; V_C1=52; V_C2=53
    V_X=54; V_T=58; V_PK=62; V_GRAM=68; V_ST=72
    ACC=[80,128,176]
    T=224
    A_RING=0; A_ACT=12*P; A_GR=A_ACT+32; A_DUMMY=A_GR+8; A_D=A_DUMMY+4
    A_D=(A_D+3)//4*4
    NAGPR=A_D+144
    assert NAGPR<=256, NAGPR
    LDS_H=73728; LDS_RSTD=147456
    vm=VQ("vm",63); lg=VQ("lgkm",15)
    stamps=[]
    def stamp(nm):
        if not dbg_time: return
        i=len(stamps); stamps.append(nm)
        A.e("s_memtime s[%d:%d]" % (44+2*i,45+2*i))
    A.raw(".globl %s\n.p2align 8\n.type %s,@function\n%s:" % (name,name,name))
    e("s_cmp_ge_u32 s2, 256")
    e("s_cbranch_scc1 %s_end" % name)
    e("s_load_dwordx2 s[4:5], s[0:1], 80")
    e("s_load_dwordx2 s[6:7], s[0:1], 40")
    if fuse:
        e("s_load_dwordx4 s[32:35], s[0:1], 56")
    stamp("start")
    e("v_and_b32 v%d, 63, v0" % V_LANE)
    e("v_lshrrev_b32 v%d, 6, v0" % T)
    if mapA=="B":
        e("s_lshr_b32 s31, s2, 3")
        e("s_and_b32 s16, s31, 7")
        e("s_and_b32 s17, s2, 7"); e("s_lshl_b32 s17, s17, 2"); e("s_lshr_b32 s19, s2, 6"); e("s_add_u32 s17, s17, s19")
    elif mapA:
        e("s_lshr_b32 s31, s2, 3")
        e("s_and_b32 s16, s2, 3"); e("s_lshl_b32 s16, s16, 1"); e("s_and_b32 s17, s31, 1"); e("s_add_u32 s16, s16, s17")
        e("s_bfe_u32 s17, s2, 0x10002"); e("s_lshl_b32 s17, s17, 4"); e("s_lshr_b32 s19, s31, 1"); e("s_add_u32 s17, s17, s19")
    else:
        e("s_and_b32 s16, s2, 7")
        e("s_lshr_b32 s17, s2, 3")
    e("v_readfirstlane_b32 s18, v%d" % T)
    e("v_lshlrev_b32 v%d, 4, v%d" % (V_L16, V_LANE))
    e("v_lshrrev_b32 v%d, 4, v%d" % (T+2, V_LANE))
    e("v_lshrrev_b32 v%d, 3, v%d" % (T+9, V_LANE))
    e("s_lshl_b32 s19, s18, 4")
    e("v_add_u32 v%d, s19, v%d" % (T+9, T+9))
    e("s_movk_i32 s23, 1152")
    e("v_mul_lo_u32 v%d, v%d, s23" % (T+9, T+9))
    e("v_and_b32 v%d, 7, v%d" % (T+10, V_LANE))
    e("v_xor_b32 v%d, v%d, v%d" % (T+11, T+10, T+2))
    e("v_xor_b32 v%d, 4, v%d" % (T+12, T+11))
    e("v_lshl_add_u32 v%d, v%d, 4, v%d" % (T+11, T+11, T+9))
    e("v_lshl_add_u32 v%d, v%d, 4, v%d" % (T+12, T+12, T+9))
    e("v_add_u32 v%d, %d, v%d" % (T+12, 8*1152, T+12))
    e("s_mul_i32 s23, s17, %d" % (64*1152))
    e("s_add_u32 s23, s23, 0x%x" % OFF_HC)
    e("s_lshl_b32 s24, s18, 11")
    e("s_lshl_b32 s25, s16, 2"); e("s_add_u32 s25, s25, s18"); e("s_mul_i32 s25, s25, 165888")
    e("s_add_u32 s20, s25, 0x%x" % OFF_W1S)
    e("s_add_u32 s21, s25, 0x%x" % OFF_W2S)
    e("s_waitcnt lgkmcnt(0)")
    stamp("karg")
    e("s_mov_b32 s8, s4"); e("s_mov_b32 s9, s5"); e("s_mov_b32 s10, 0x%x" % WS_BYTES); e("s_mov_b32 s11, 0x20000")
    dma_ids={}
    def dma(cb,g):
        L=["s_add_u32 m0, s24, %d" % (cb*8192 + g*1024),
           ("s_add_u32 s23, s23, 128" if (g==0 and cb>0) else "s_nop 0"),
           ("vmid", "buffer_load_dwordx4 v%d, s[8:11], s23 offen lds" % (T+11+g), dma_ids, (cb,g))]
        return L
    def emit_filler(f):
        if isinstance(f,str): e(f)
        elif f[0]=="call":
            s=f[1]()
            if s: e(s)
        elif f[0]=="lds": e(f[1]); lg.issue()
        elif f[0]=="vm": e(f[1]); vm.issue()
        elif f[0]=="vmid": e(f[1]); f[2][f[3]]=vm.issue()
        elif f[0]=="grp":
            for g in f[1]: emit_filler(g)
    ncb0 = 3 if stage else 9
    for cb in range(ncb0):
        for g in range(2):
            for f in dma(cb,g): emit_filler(f)
    ring_ids={}
    gfree=list(gfree)
    pools=[]
    for k in range(P): pools.append(["a", A_RING+12*k, -1, 999])
    for cc in range(3):
        for k in range(4): pools.append(["a", A_D+cc*48+12*k, -1, 54+6*cc])
    for c,fr in ((0,gfree[0]),(1,gfree[1]),(2,gfree[2])):
        for k in range(4): pools.append(["v", ACC[c]+12*k, fr, 999])
    slot_free=[p[2] for p in pools]
    slot_of={}; issue_at={}
    def plan():
        t=-1; cnt={}
        for n in range(108):
            pd=PD if PD0 is None else (PD0 if n<40 else min(PD, PD0+(n-40)//4+1))
            want=max(n-pd, -1 if n<P0 else 0)
            if n<P0: want=-1
            tt=max(want, issue_at.get(n-1,-1))
            while True:
                if tt>=0 and cnt.get(tt,0)>=2: tt+=1; continue
                cand=[i for i,p in enumerate(pools) if slot_free[i]<=tt and p[3]>n]
                if cand: break
                tt+=1
                assert tt<=n-1, ("no slot", n, tt)
            i=min(cand,key=lambda i:(pools[i][3],i))
            slot_of[n]=i; issue_at[n]=tt; cnt[tt]=cnt.get(tt,0)+1
            slot_free[i]=n+1
            assert tt<n or n<P0, (n,tt)
    plan()
    print("prefetch distance: min %d, by phase" % min(n-issue_at[n] for n in range(P0,100)), [n-issue_at[n] for n in (10,30,50,56,62,70,80,95,107)])
    def wreg_of(t, mb):
        p=pools[slot_of[t]]
        return (ar if p[0]=="a" else vr)(p[1]+mb*4,4)
    def issue_w(t, mb):
        e("buffer_load_dwordx4 %s, v%d, s[8:11], s20 offen offset:%d" % (wreg_of(t,mb), V_L16, mb*1024))
        ring_ids[(t,mb)]=vm.issue()
    def adv_w(t):
        if t+1==54: e("s_mov_b32 s20, s21")
        else: e("s_add_u32 s20, s20, 3072")
    for t in range(P0):
        for mb in range(3): issue_w(t,mb)
        adv_w(t)
    nxt=[P0]
    stamp("issued")
    e("s_mov_b32 s12, s6"); e("s_mov_b32 s13, s7"); e("s_mov_b32 s14, %d" % (F*2)); e("s_mov_b32 s15, 0x20000")
    e("v_and_b32 v%d, 15, v%d" % (T+1, V_LANE))
    e("v_lshrrev_b32 v%d, 1, v%d" % (T+3, T+1))
    e("v_xor_b32 v%d, v%d, v%d" % (T+4, T+2, T+3))
    e("v_lshlrev_b32 v%d, 4, v%d" % (T+4, T+4))
    e("v_lshl_add_u32 v%d, v%d, 7, v%d" % (V_AE, T+1, T+4))
    e("v_xor_b32 v%d, 64, v%d" % (V_AO, V_AE))
    e("v_add_u32 v%d, 0x10000, v%d" % (V_AE8, V_AE))
    e("v_add_u32 v%d, 0x10000, v%d" % (V_AO8, V_AO))
    e("v_add_u32 v%d, %d, v%d" % (V_HE, LDS_H, V_AE))
    e("v_add_u32 v%d, %d, v%d" % (V_HO, LDS_H, V_AO))
    e("v_add_u32 v%d, %d, v%d" % (V_HE8, LDS_H+0x10000, V_AE))
    e("v_add_u32 v%d, %d, v%d" % (V_HO8, LDS_H+0x10000, V_AO))
    e("v_add_u32 v%d, s24, v%d" % (V_GE, V_AE))
    e("v_add_u32 v%d, s24, v%d" % (V_GO, V_AO))
    e("v_add_u32 v%d, s24, v%d" % (V_GE8, V_AE8))
    e("v_add_u32 v%d, s24, v%d" % (V_GO8, V_AO8))
    e("s_mul_i32 s19, s18, 6")
    e("v_lshrrev_b32 v%d, 1, v%d" % (T+5, T+2))
    e("v_add_u32 v%d, s19, v%d" % (T+5, T+5))
    e("v_and_b32 v%d, 1, v%d" % (T+6, T+2))
    e("v_lshlrev_b32 v%d, 3, v%d" % (T+6, T+6))
    e("v_lshl_add_u32 v%d, v%d, 7, v%d" % (T+6, T+1, T+6))
    e("v_add_u32 v%d, %d, v%d" % (T+6, LDS_H, T+6))
    for mb in range(3):
        e("v_add_u32 v%d, %d, v%d" % (T+7, 2*mb, T+5))
        e("v_lshrrev_b32 v%d, 3, v%d" % (T+8, T+7))
        e("v_and_b32 v%d, 7, v%d" % (T+7, T+7))
        e("v_xor_b32 v%d, v%d, v%d" % (T+7, T+7, T+3))
        e("v_lshlrev_b32 v%d, 4, v%d" % (T+7, T+7))
        e("v_lshl_add_u32 v%d, v%d, 13, v%d" % (T+7, T+8, T+7))
        e("v_add_u32 v%d, v%d, v%d" % (V_WA+mb, T+7, T+6))
    c1 = 2.0*math.sqrt(2.0/math.pi)*math.log2(math.e); c2 = c1*0.044715
    kap_=c2**(1.0/3.0)
    e("v_mov_b32 v%d, %s" % (V_C1, fhex(c1/kap_)))
    e("v_mov_b32 v%d, %s" % (V_C2, fhex(kap_)))
    e("s_lshl_b32 s25, s16, 5"); e("s_add_u32 s25, s25, s17"); e("s_lshl_b32 s25, s25, 2"); e("s_add_u32 s25, s25, s18")
    e("s_mul_i32 s25, s25, 18432")
    e("s_add_u32 s22, s25, 0x%x" % OFF_PART)
    e("v_lshlrev_b32 v%d, 3, v%d" % (T+13, T+2))
    e("s_mul_i32 s25, s16, 1152"); e("s_mul_i32 s26, s18, 288"); e("s_add_u32 s30, s25, s26")
    extra={t:[] for t in range(108)}
    if stage:
        for cb in range(3,9):
            st=2*(cb-3)
            for g in range(2): extra[st+g].append(("grp", dma(cb,g)))
    bias_ids={}
    for c in range(3):
        for mb in range(3):
            extra[12+2*c].append(("vmid","buffer_load_dwordx2 %s, v%d, s[12:15], s30 offen offset:%d" % (vr(V_BRAW+(c*3+mb)*2,2), T+13, c*96+mb*32), bias_ids,(c,mb)))
    if warm:
        if mapA:
            L=["s_mul_i32 s26, s18, 81", "v_add_u32 v%d, s26, v%d" % (T+14, V_LANE), "v_lshlrev_b32 v%d, 7, v%d" % (T+14, T+14),
               "s_and_b32 s25, s2, 3", "s_mul_i32 s25, s25, %d" % (2*663552), "s_mul_i32 s26, s31, %d" % (324*128), "s_add_u32 s25, s25, s26",
               "s_add_u32 s27, s25, 0x%x" % OFF_W2S, ("vm","buffer_load_dword a%d, v%d, s[8:11], s27 offen" % (A_DUMMY+1, T+14)),
               "v_min_u32 v%d, 16, v%d" % (T+15, V_LANE), "s_mul_i32 s26, s18, 81", "s_add_u32 s26, s26, 64", "v_add_u32 v%d, s26, v%d" % (T+15, T+15), "v_lshlrev_b32 v%d, 7, v%d" % (T+15, T+15),
               ("vm","buffer_load_dword a%d, v%d, s[8:11], s27 offen" % (A_DUMMY+2, T+15))]
        else:
            L=["s_lshl_b32 s26, s18, 6", "v_add_u32 v%d, s26, v%d" % (T+14, V_LANE), "v_min_u32 v%d, 161, v%d" % (T+14, T+14),
               "v_lshlrev_b32 v%d, 7, v%d" % (T+14, T+14), "s_mul_i32 s25, s16, 663552", "s_mul_i32 s26, s17, 20736", "s_add_u32 s25, s25, s26",
               "s_add_u32 s27, s25, 0x%x" % OFF_W2S, ("vm","buffer_load_dword a%d, v%d, s[8:11], s27 offen" % (A_DUMMY+1, T+14))]
        extra[19]+=L
    e(waitcnt(vm=vm.need(dma_ids[(ncb0-1,1)])))
    stamp("dma_done")
    e("s_barrier")
    act_ids={}
    def step_info(t):
        if t<36:
            kap=t//12; c=(t%12)//6; ks=6*kap+t%6
            return ("g1", ks, ACC[c], ks==0, False)
        if t<54: return ("g1", t-36, ACC[2], t==36, False)
        u=t-54; kap=u//18; cc=(u%18)//6; ksl=u%6
        return ("g2", 6*kap+ksl, A_D+cc*48, kap==0 and ksl==0, True)
    def gram_step(t):
        return t<36 and (t%12)<6
    def next_gram(t):
        n=t+1
        while n<36 and not gram_step(n): n+=1
        return n if n<36 else None
    def issue_act(t, nb):
        kind,ks,_,_,_=step_info(t)
        cb=ks>>1; odd=ks&1
        regs=(V_AE,V_AO,V_AE8,V_AO8) if kind=="g1" else (V_HE,V_HO,V_HE8,V_HO8)
        v,off=(regs[odd], cb*8192+nb*2048) if cb<8 else (regs[2+odd], nb*2048)
        e("ds_read_b128 %s, v%d offset:%d" % (ar(A_ACT+(t&1)*16+nb*4,4), v, off))
        act_ids[(t,nb)]=lg.issue()
    gr_ids={}
    def issue_gr(t):
        ks=step_info(t)[1]
        cb=ks>>1; odd=ks&1
        v,off=((V_GE,V_GO)[odd], cb*8192) if cb<8 else ((V_GE8,V_GO8)[odd], 0)
        e("ds_read_b128 %s, v%d offset:%d" % (ar(A_GR+(t&1)*4,4), v, off))
        gr_ids[t]=lg.issue()
    for nb in range(4): issue_act(0,nb)
    issue_gr(0)

    def gelu_fillers(c, acc):
        L=[("call", lambda c=c: waitcnt(vm=vm.need(bias_ids[(c,2)])))]
        for mb in range(3):
            raw=V_BRAW+(c*3+mb)*2; b=V_BIAS+mb*4
            L+=["v_lshlrev_b32 v%d, 16, v%d" % (b+0, raw), "v_and_b32 v%d, 0xffff0000, v%d" % (b+1, raw),
                "v_lshlrev_b32 v%d, 16, v%d" % (b+2, raw+1), "v_and_b32 v%d, 0xffff0000, v%d" % (b+3, raw+1)]
            for r in range(4): L.append("v_mul_f32 v%d, v%d, v%d" % (b+r, V_C2, b+r))
        k=0
        for mb in range(3):
            for nb in range(4):
                a=acc+(mb*4+nb)*4; b=V_BIAS+mb*4; pkr=V_PK+(k&1)*2; k+=1
                for r in range(4): L.append("v_fma_f32 v%d, v%d, v%d, v%d" % (V_X+r, a+r, V_RSTD+nb, b+r))
                for r in range(4): L.append("v_fma_f32 v%d, v%d, v%d, v%d" % (V_T+r, V_X+r, V_X+r, V_C1))
                for r in range(4): L.append("v_mul_f32 v%d, v%d, v%d" % (V_T+r, V_X+r, V_T+r))
                for r in range(4): L.append("v_exp_f32_e64 v%d, -v%d" % (V_T+r, V_T+r))
                for r in range(4): L.append("v_fma_f32 v%d, v%d, v%d, v%d" % (V_T+r, V_T+r, V_C2, V_C2))
                for r in range(4): L.append("v_rcp_f32 v%d, v%d" % (V_T+r, V_T+r))
                for r in range(4): L.append("v_mul_f32 v%d, v%d, v%d" % (V_X+r, V_X+r, V_T+r))
                L.append("v_cvt_pk_bf16_f32 v%d, v%d, v%d" % (pkr, V_X, V_X+1))
                L.append("v_cvt_pk_bf16_f32 v%d, v%d, v%d" % (pkr+1, V_X+2, V_X+3))
                L.append(("lds", "ds_write_b64 v%d, %s offset:%d" % (V_WA+mb, vr(pkr,2), c*24576+nb*2048)))
        return L
    def store_fillers(cc):
        L=[]
        acc=A_D+cc*48
        for jj in range(6):
            st=V_ST+(jj&1)*4
            for tt in range(2):
                a=acc+(2*jj+tt)*4
                for r in range(4): L.append("v_accvgpr_read_b32 v%d, a%d" % (V_X+tt*4+r, a+r))
            for tt in range(2):
                L.append("v_cvt_pk_bf16_f32 v%d, v%d, v%d" % (st+2*tt, V_X+tt*4, V_X+tt*4+1))
                L.append("v_cvt_pk_bf16_f32 v%d, v%d, v%d" % (st+2*tt+1, V_X+tt*4+2, V_X+tt*4+3))
            if not nostores: L.append(("vm", "buffer_store_dwordx4 %s, v%d, s[8:11], s22 offen %s" % (vr(st,4), V_L16, store_flags)))
            L.append("s_add_u32 s22, s22, 1024")
        return L
    def stats_fillers():
        L=[]; g=V_GRAM
        L+=["v_and_b32 v%d, 3, v%d" % (T+20, V_LANE), "v_cmp_eq_u32 vcc, 1, v%d" % (T+20), "s_nop 1",
            "v_cndmask_b32 v%d, v%d, v%d, vcc" % (T+21, g, g+1), "v_cmp_eq_u32 vcc, 2, v%d" % (T+20), "s_nop 1",
            "v_cndmask_b32 v%d, v%d, v%d, vcc" % (T+21, T+21, g+2), "v_cmp_eq_u32 vcc, 3, v%d" % (T+20), "s_nop 1",
            "v_cndmask_b32 v%d, v%d, v%d, vcc" % (T+21, T+21, g+3),
            "v_mov_b32 v%d, %s" % (T+22, fhex(1e-5)), "v_fmac_f32 v%d, %s, v%d" % (T+22, fhex(1.0/576.0), T+21),
            "v_rsq_f32 v%d, v%d" % (T+22, T+22), "v_lshrrev_b32 v%d, 2, v%d" % (T+23, T+1), "v_mul_f32 v%d, v%d, v%d" % (T+22, V_C2, T+22), "s_lshl_b32 s19, s18, 6",
            "v_lshlrev_b32 v%d, 2, v%d" % (T+24, T+1), "v_add_u32 v%d, s19, v%d" % (T+24, T+24),
            "v_add_u32 v%d, %d, v%d" % (T+24, LDS_RSTD, T+24), "v_cmp_eq_u32 vcc, v%d, v%d" % (T+23, T+2),
            "s_and_saveexec_b64 s[28:29], vcc", ("lds", "ds_write_b32 v%d, v%d" % (T+24, T+22)), "s_mov_b64 exec, s[28:29]"]
        return L

    rst=[None]
    g0=gelu_fillers(0,ACC[0]); g0.insert(25,("call", lambda: waitcnt(lgkm=lg.need(rst[0]))))
    g1=gelu_fillers(1,ACC[1]); g2=gelu_fillers(2,ACC[2])
    gq=g0+g1+g2
    ng=len(gq); gb=[0,len(g0),len(g0)+len(g1),ng]
    gpos=0
    gdone={}
    sq=[]
    rstd_id=None
    for t in range(108):
        kind,ks,acc,first,isA=step_info(t)
        if t in stamp_steps: stamp("t%d" % t)
        bar = t in ((11,23,30,53,71,89) if stage else (30,53,71,89))
        nv=vm.need(ring_ids[(t,2)])
        if stage and t in (11,23):
            cb=5 if t==11 else 8
            n2=vm.need(dma_ids[(cb,1)])
            if n2 is not None: nv = n2 if nv is None else min(nv,n2)
        if bar: lg.drain(); nl=0
        else:
            last=act_ids[(t,3)]
            if gram_step(t): last=max(last, gr_ids[t])
            nl=lg.need(last)
        w=waitcnt(vm=nv, lgkm=nl)
        if w: e(w)
        if bar: e("s_barrier")
        if t==30:
            e("v_lshlrev_b32 v%d, 2, v%d" % (T+25, T+1))
            e("v_add_u32 v%d, %d, v%d" % (T+25, LDS_RSTD, T+25))
            for nb in range(4):
                e("ds_read_b32 v%d, v%d offset:%d" % (V_RSTD+nb, T+25, nb*64)); rst[0]=lg.issue()
        mine=list(extra[t])
        if gelu_start<=t<gelu_end:
            target=ng*(t-gelu_start+1)//(gelu_end-gelu_start)
            lim = gb[0 if t<30 else 1 if t<36 else 2 if t<54 else 3]
            target=min(target,lim)
            g=gq[gpos:target]
            mine+=g; gpos=max(gpos,target)
            for c in range(3):
                if gpos>=gb[c+1] and c not in gdone: gdone[c]=t
        if t in (96,102): sq=store_fillers(0 if t==96 else 1)
        if sq:
            left = (102-t) if t<102 else (108-t)
            n=-(-len(sq)//left); mine+=sq[:n]; sq=sq[n:]
        per=[len(mine)*(i+1)//12 - len(mine)*i//12 for i in range(12)]
        pos=0
        todo=[n for n in range(P0,108) if issue_at[n]==t]
        for i in range(12):
            mb=i//4; nb=i%4
            wreg=wreg_of(t,mb); areg=ar(A_ACT+(t&1)*16+nb*4,4)
            d=ar(acc+i*4,4) if isA else vr(acc+i*4,4)
            e("v_mfma_f32_16x16x32_bf16 %s, %s, %s, %s" % (d, wreg, areg, "0" if first else d))
            if i<4 and t+1<108: issue_act(t+1,i)
            if i==4 and gram_step(t):
                g=ar(A_GR+(t&1)*4,4)
                e("v_mfma_f32_16x16x32_bf16 %s, %s, %s, %s" % (vr(V_GRAM,4), g, g, "0" if t==0 else vr(V_GRAM,4)))
            if i==5 and t+1<36 and gram_step(t+1): issue_gr(t+1)
            if len(todo)==2 and i<3:
                issue_w(todo[0], i)
                if i==2: adv_w(todo[0])
            if todo and nb==3:
                issue_w(todo[-1], mb)
                if mb==2: adv_w(todo[-1])
            for f in mine[pos:pos+per[i]]: emit_filler(f)
            pos+=per[i]
        if t==29:
            e("s_nop 7")
            for f in stats_fillers(): emit_filler(f)
    assert gpos==ng and not sq, (gpos,ng,len(sq))
    for c in range(3): assert gdone[c]<gfree[c], (gdone,gfree)
    assert gdone[0]<53 and gdone[1]<71 and gdone[2]<89, gdone
    print("gelu chunk done at steps", gdone)
    e("s_nop 7")
    for f in store_fillers(2): emit_filler(f)
    if fuse:
        stamp("stores_issued")
        LDS_MASK=LDS_RSTD+256
        e("s_waitcnt vmcnt(0)")
        e("s_barrier")
        stamp("drained")
        e("s_lshl_b32 s25, s17, 8"); e("s_add_u32 s25, s25, 0x%x" % OFF_CNT)
        e("s_lshl_b32 s26, 1, s16")
        e("s_cmp_lg_u32 s18, 0")
        e("s_cbranch_scc1 %s_wm" % name)
        e("s_mov_b64 exec, 1")
        e("v_mov_b32 v60, 0"); e("v_mov_b32 v61, 1")
        e("buffer_atomic_add v61, v60, s[8:11], s25 offen sc0")
        e("s_waitcnt vmcnt(0)")
        e("v_readfirstlane_b32 s27, v61")
        e("s_nop 3")
        e("s_and_b32 s28, s27, 0xff")
        e("s_cmp_eq_u32 s28, 7")
        e("s_cbranch_scc0 %s_spin0" % name)
        e("s_lshr_b32 s27, s27, 8"); e("s_and_b32 s27, s27, 0xff"); e("s_or_b32 s26, s26, s27")
        e("s_branch %s_pub" % name)
        A.label("%s_spin0" % name)
        e("s_mov_b32 s29, %d" % spin)
        A.label("%s_spin" % name)
        e("buffer_load_dword v61, v60, s[8:11], s25 offen sc1")
        e("s_waitcnt vmcnt(0)")
        e("v_readfirstlane_b32 s27, v61")
        e("s_nop 3")
        e("s_and_b32 s28, s27, 0xff")
        e("s_cmp_eq_u32 s28, 8")
        e("s_cbranch_scc1 %s_pub" % name)
        e("s_sub_u32 s29, s29, 1")
        e("s_cmp_lg_u32 s29, 0")
        e("s_cbranch_scc1 %s_spin" % name)
        e("s_lshl_b32 s27, s26, 8")
        e("v_mov_b32 v61, s27")
        e("buffer_atomic_or v61, v60, s[8:11], s25 offen sc0")
        e("s_waitcnt vmcnt(0)")
        e("v_readfirstlane_b32 s27, v61")
        e("s_nop 3")
        e("s_and_b32 s28, s27, 0xff")
        e("s_cmp_eq_u32 s28, 8")
        e("s_cselect_b32 s26, s26, 0")
        A.label("%s_pub" % name)
        e("v_mov_b32 v61, s26")
        e("v_mov_b32 v60, %d" % LDS_MASK)
        e("ds_write_b32 v60, v61")
        e("s_waitcnt lgkmcnt(0)")
        e("s_mov_b64 exec, -1")
        A.label("%s_wm" % name)
        e("s_barrier")
        e("v_mov_b32 v60, %d" % LDS_MASK)
        e("ds_read_b32 v61, v60")
        e("v_and_b32 v62, 15, v%d" % V_LANE); e("v_lshrrev_b32 v63, 4, v%d" % V_LANE)
        e("s_movk_i32 s27, 1152"); e("v_mul_lo_u32 v64, v62, s27"); e("v_lshl_add_u32 v64, v63, 3, v64")
        e("v_lshlrev_b32 v65, 2, v62")
        e("v_lshlrev_b32 v66, 3, v63")
        e("v_mov_b32 v68, 0x00003f80"); e("v_mov_b32 v69, 0x3f800000")
        e("s_mov_b32 s36, s32"); e("s_mov_b32 s37, s33"); e("s_mov_b32 s38, 1152"); e("s_mov_b32 s39, 0x20000")
        e("s_mov_b32 s40, s34"); e("s_mov_b32 s41, s35"); e("s_mov_b32 s42, %d" % (S*D*2)); e("s_mov_b32 s43, 0x20000")
        e("s_waitcnt lgkmcnt(0)")
        e("v_readfirstlane_b32 s26, v61")
        e("s_nop 3")
        stamp("mask")
        A.label("%s_loop" % name)
        e("s_cmp_eq_u32 s26, 0")
        e("s_cbranch_scc1 %s_done" % name)
        e("s_ff1_i32_b32 s27, s26"); e("s_bitset0_b32 s26, s27")
        e("s_mul_i32 s27, s27, 9"); e("s_add_u32 s27, s27, s18")
        def blk_loads(sg):
            R=80+40*sg
            e("s_mul_hi_u32 s28, s27, 0x%x" % ((2**32+17)//18)); e("s_mul_i32 s29, s28, 18"); e("s_sub_u32 s29, s27, s29")
            e("s_mul_hi_u32 s30, s29, 0x2aaaaaab"); e("s_mul_i32 s31, s30, 6"); e("s_sub_u32 s31, s29, s31")
            e("s_mul_i32 s28, s28, 144"); e("s_mul_i32 s30, s30, 48"); e("s_add_u32 s28, s28, s30")
            e("s_lshr_b32 s30, s31, 1"); e("s_lshl_b32 s30, s30, 4"); e("s_add_u32 s28, s28, s30")
            e("s_and_b32 s31, s31, 1"); e("s_lshl_b32 s31, s31, 5"); e("s_lshl_b32 s30, s17, 6"); e("s_add_u32 s31, s31, s30")
            e("s_mul_i32 s30, s17, 72"); e("s_add_u32 s30, s30, s27"); e("s_lshl_b32 s30, s30, 10"); e("s_add_u32 s30, s30, 0x%x" % OFF_PART)
            for jp in range(8):
                e("buffer_load_dwordx4 %s, v%d, s[8:11], s30 offen %s" % (vr(R+4*jp,4), V_L16, ldflags))
                if jp<7: e("s_add_u32 s30, s30, %d" % (S*D*2))
            so=80+4*sg
            e("s_mul_i32 s30, s31, 1152"); e("s_lshl_b32 s29, s28, 1"); e("s_add_u32 s%d, s30, s29" % so)
            e("s_add_u32 s%d, s%d, %d" % (so+1, so, 16*1152))
            e("s_add_u32 s30, s%d, 0x%x" % (so, OFF_HC))
            e("buffer_load_dwordx2 %s, v64, s[8:11], s30 offen" % vr(R+32,2))
            e("s_add_u32 s30, s%d, 0x%x" % (so+1, OFF_HC))
            e("buffer_load_dwordx2 %s, v64, s[8:11], s30 offen" % vr(R+34,2))
            e("s_lshl_b32 s30, s31, 2"); e("s_add_u32 s30, s30, 0x%x" % OFF_MEAN)
            e("buffer_load_dword v%d, v65, s[8:11], s30 offen" % (R+36))
            e("buffer_load_dword v%d, v65, s[8:11], s30 offen offset:64" % (R+37))
            e("buffer_load_dwordx2 %s, v66, s[36:39], s29 offen" % vr(R+38,2))
        def blk_sum(sg):
            R=80+40*sg; so=80+4*sg; a=208
            e("v_lshlrev_b32 v%d, 16, v%d" % (a+8, R+38)); e("v_and_b32 v%d, 0xffff0000, v%d" % (a+9, R+38))
            e("v_lshlrev_b32 v%d, 16, v%d" % (a+10, R+39)); e("v_and_b32 v%d, 0xffff0000, v%d" % (a+11, R+39))
            for jp in range(8):
                for i in range(4):
                    for hh in range(2):
                        c = (a+8+(i&1)*2+hh) if jp==0 else (a+2*i+hh)
                        e("v_dot2_f32_bf16 v%d, v%d, v%d, v%d" % (a+2*i+hh, R+4*jp+i, 68+hh, c))
            for i in range(4):
                for hh in range(2):
                    e("v_dot2_f32_bf16 v%d, v%d, v%d, v%d" % (a+2*i+hh, R+32+i, 68+hh, a+2*i+hh))
            for i in range(4):
                for hh in range(2):
                    e("v_add_f32 v%d, v%d, v%d" % (a+2*i+hh, a+2*i+hh, R+36+(i>>1)))
            for i in range(4): e("v_cvt_pk_bf16_f32 v%d, v%d, v%d" % (a+16+i, a+2*i, a+2*i+1))
            e("buffer_store_dwordx2 %s, v64, s[40:43], s%d offen" % (vr(a+16,2), so))
            e("buffer_store_dwordx2 %s, v64, s[40:43], s%d offen" % (vr(a+18,2), so+1))
        blk_loads(0)
        e("s_add_u32 s27, s27, 4")
        blk_loads(1)
        e("s_cmp_lg_u32 s18, 0")
        e("s_cbranch_scc1 %s_two" % name)
        e("s_add_u32 s27, s27, 4")
        blk_loads(2)
        e("s_waitcnt vmcnt(26)"); blk_sum(0)
        e("s_waitcnt vmcnt(15)"); blk_sum(1)
        e("s_waitcnt vmcnt(4)"); blk_sum(2)
        e("s_branch %s_loop" % name)
        A.label("%s_two" % name)
        e("s_waitcnt vmcnt(13)"); blk_sum(0)
        e("s_waitcnt vmcnt(2)"); blk_sum(1)
        e("s_branch %s_loop" % name)
        A.label("%s_done" % name)
    if dbg_time:
        if not fuse: stamp("stores_issued")
        e("s_waitcnt vmcnt(0)")
        stamp("end")
        e("s_waitcnt lgkmcnt(0)")
        e("s_mov_b32 s36, s4"); e("s_mov_b32 s37, s5"); e("s_mov_b32 s38, 0x%x" % WS_BYTES); e("s_mov_b32 s39, 0x20000")
        e("s_lshl_b32 s40, s2, 2"); e("s_add_u32 s40, s40, s18"); e("s_lshl_b32 s40, s40, 7"); e("s_add_u32 s40, s40, 0x4000000")
        e("v_mov_b32 v%d, 0" % (T+1))
        for i in range(len(stamps)):
            e("v_mov_b32 v%d, s%d" % (T, 44+2*i))
            e("buffer_store_dword v%d, v%d, s[36:39], s40 offen offset:%d" % (T, T+1, 4*i))
            e("s_nop 1")
        print("stamps:", stamps)
    A.label("%s_end" % name)
    e("s_endpgm")
    kd=KD_FMT.format(name=name, vgpr=256+NAGPR, sgpr=100, accum=256)
    return A.text(), kd, LDS_RSTD+512, 256
```

```python
from asmlib import *
from layout import *
from swz import *
import math

NT_WT = 64
NSW = 162

def gen_k1(name="k1_kernel", prefetch=True, flags="", first="k2_kernel", last="text_end", swzflags="sc1", w1=True, wtouch=False, prio=True, tlb=False):
    A=Asm(); e=A.e
    A.raw(".globl %s\n.p2align 8\n.type %s,@function\n%s:" % (name,name,name))
    nsw=NSW if w1 else 0
    e("s_cmp_ge_u32 s2, %d" % (256+NT_WT+nsw))
    e("s_cbranch_scc1 %s_end" % name)
    e(";@S start")
    e("s_load_dwordx2 s[4:5], s[0:1], 80")
    e("s_load_dwordx2 s[6:7], s[0:1], 0")
    e("s_load_dwordx4 s[36:39], s[0:1], 8")
    e("s_load_dwordx2 s[44:45], s[0:1], 32")
    e("s_load_dwordx2 s[46:47], s[0:1], 48")
    e("v_and_b32 v1, 63, v0")
    if prefetch:
        e("s_getpc_b64 s[40:41]")
        A.label("%s_pc0" % name)
        e("s_sub_u32 s40, s40, %s_pc0 - %s" % (name,name)); e("s_subb_u32 s41, s41, 0")
        e("v_lshlrev_b32 v213, 7, v1")
        e("global_load_dword v212, v213, s[40:41]")
        e("v_add_u32 v213, 0x2000, v213")
        e("global_load_dword v212, v213, s[40:41]")
    e("v_lshrrev_b32 v2, 6, v0")
    e("s_nop 0")
    e("v_readfirstlane_b32 s18, v2")
    e("s_cmp_ge_u32 s2, 256")
    e("s_cbranch_scc1 %s_wt" % name)
    if prio: e("s_setprio 3")
    LDS_ST=36864
    V_L15=2; V_Q=3; V_BE=4; V_BO=5; V_DMA=6
    V_SG=7; V_DL=10; V_B0=13; V_T2=16; V_SO=19
    ACC=24
    BF=72
    AF=180
    e("s_and_b32 s16, s2, 7")
    e("s_lshr_b32 s17, s2, 3")
    e("s_and_b32 s19, s17, 3")
    e("s_lshr_b32 s17, s17, 2"); e("s_lshl_b32 s17, s17, 3"); e("s_add_u32 s17, s17, s16")
    e("v_and_b32 v%d, 15, v1" % V_L15)
    e("v_lshrrev_b32 v%d, 4, v1" % V_Q)
    e("v_lshrrev_b32 v22, 1, v%d" % V_L15)
    e("v_xor_b32 v22, v%d, v22" % V_Q)
    e("v_lshlrev_b32 v22, 4, v22")
    e("v_lshl_add_u32 v%d, v%d, 7, v22" % (V_BE, V_L15))
    e("v_xor_b32 v%d, 64, v%d" % (V_BO, V_BE))
    e("v_lshrrev_b32 v22, 3, v1")
    e("s_lshl_b32 s20, s18, 3")
    e("v_add_u32 v22, s20, v22")
    e("s_movk_i32 s21, 1152")
    e("v_mul_lo_u32 v22, v22, s21")
    e("s_lshl_b32 s20, s18, 2")
    e("v_add_u32 v23, s20, v%d" % V_Q)
    e("v_and_b32 v23, 7, v23")
    e("v_and_b32 v%d, 7, v1" % V_DMA)
    e("v_xor_b32 v%d, v%d, v23" % (V_DMA, V_DMA))
    e("v_lshl_add_u32 v%d, v%d, 4, v22" % (V_DMA, V_DMA))
    e("s_waitcnt lgkmcnt(0)")
    e(";@S karg")
    e("s_mov_b32 s8, s4"); e("s_mov_b32 s9, s5"); e("s_mov_b32 s10, 0x%x" % WS_BYTES); e("s_mov_b32 s11, 0x20000")
    e("s_mov_b32 s12, s6"); e("s_mov_b32 s13, s7"); e("s_mov_b32 s14, %d" % (S*D*2)); e("s_mov_b32 s15, 0x20000")
    e("s_mul_i32 s23, s17, %d" % (32*1152))
    e("s_lshl_b32 s24, s18, 10")
    for cb in range(9):
        e("s_add_u32 m0, s24, %d" % (cb*4096))
        if cb>0: e("s_add_u32 s23, s23, 128")
        else: e("s_nop 0")
        e("buffer_load_dwordx4 v%d, s[12:15], s23 offen lds" % V_DMA)
    e("s_cmp_eq_u32 s18, 3")
    e("s_cbranch_scc1 %s_stats" % name)
    e("s_mul_i32 s20, s19, 144"); e("s_mul_i32 s21, s18, 48"); e("s_add_u32 s20, s20, s21")
    for nb in range(3):
        c="v22"; k="v23"
        e("v_add_u32 v22, s20, v%d" % V_L15)
        if nb: e("v_add_u32 v22, %d, v22" % (16*nb))
        e("v_lshlrev_b32 v%d, 12, v22" % (V_SO+nb))
        e("v_lshrrev_b32 v23, 1, v22")
        e("v_and_b32 v22, 1, v22")
        e("v_and_b32 v%d, 1, v23" % (V_SG+nb))
        e("v_lshlrev_b32 v%d, 31, v%d" % (V_SG+nb, V_SG+nb))
        e("v_or_b32 v%d, 1.0, v%d" % (V_SG+nb, V_SG+nb))
        e("v_cmp_eq_u32 vcc, 0, v23")
        e("v_mov_b32 v%d, 0x120" % (V_DL+nb))
        e("v_cvt_f32_u32 v22, v22")
        e("v_cndmask_b32 v23, v23, v%d, vcc" % (V_DL+nb))
        e("v_cvt_f32_u32 v23, v23")
        e("v_mul_f32 v%d, %s, v23" % (V_DL+nb, fhex(1.0/576.0)))
        e("v_cvt_f32_u32 v23, v%d" % V_Q)
        e("v_mul_f32 v23, 8.0, v23") if False else e("v_mul_f32 v23, %s, v23" % fhex(8.0))
        e("v_mul_f32 v22, %s, v22" % fhex(0.25))
        e("v_fma_f32 v%d, v%d, v23, v22" % (V_B0+nb, V_DL+nb))
        e("v_mul_f32 v22, %s, v%d" % (fhex(32.0), V_DL+nb))
        e("v_fract_f32 v22, v22")
        e("v_cos_f32 v22, v22")
        e("s_nop 0")
        e("v_add_f32 v%d, v22, v22" % (V_T2+nb))
    e("s_lshl_b32 s21, s17, 6")
    e("v_lshlrev_b32 v22, 3, v%d" % V_Q)
    e("v_add_u32 v22, s21, v22")
    for nb in range(3): e("v_add_u32 v%d, v%d, v22" % (V_SO+nb, V_SO+nb))
    G=[ACC, ACC+24]
    def pack(ks, g):
        for nb in range(3):
            for j in range(4):
                e("v_cvt_pk_bf16_f32 v%d, v%d, v%d" % (BF+(ks*3+nb)*4+j, g+nb*8+2*j, g+nb*8+2*j+1))
    for ks in range(2):
        g=G[ks]
        for nb in range(3):
            for i in range(8):
                cst=32*ks+i
                if cst==0: e("v_cos_f32 v%d, v%d" % (g+nb*8+i, V_B0+nb))
                else:
                    e("v_fmamk_f32 v%d, v%d, %s, v%d" % (g+nb*8+i, V_DL+nb, fhex(float(cst)), V_B0+nb))
            for i in range(8):
                cst=32*ks+i
                if cst: e("v_cos_f32 v%d, v%d" % (g+nb*8+i, g+nb*8+i))
        e("s_nop 0")
        pack(ks,g)
    for ks in range(2,9):
        g=G[ks&1]; gp=G[(ks-1)&1]
        for nb in range(3):
            for i in range(8):
                e("v_fma_f32 v%d, v%d, v%d, -v%d" % (g+nb*8+i, V_T2+nb, gp+nb*8+i, g+nb*8+i))
        pack(ks,g)
    e("s_waitcnt vmcnt(0)")
    e(";@S x_arr")
    e("s_barrier")
    def rdA(ks, buf):
        for half in range(2):
            kk=ks+9*half
            for mb in range(2):
                v=V_BO if kk&1 else V_BE
                e("ds_read_b128 %s, v%d offset:%d" % (vr(AF+buf*16+(half*2+mb)*4,4), v, (kk>>1)*4096+mb*2048))
    rdA(0,0)
    for ks in range(9):
        if ks<8:
            rdA(ks+1,(ks+1)&1); e("s_waitcnt lgkmcnt(4)")
        else: e("s_waitcnt lgkmcnt(0)")
        for half in range(2):
            for mb in range(2):
                for nb in range(3):
                    d=vr(ACC+half*24+(mb*3+nb)*4,4)
                    e("v_mfma_f32_16x16x32_bf16 %s, %s, %s, %s" % (d, vr(AF+(ks&1)*16+(half*2+mb)*4,4), vr(BF+(ks*3+nb)*4,4), "0" if ks==0 else d))
    e("s_barrier")
    e("v_lshlrev_b32 v22, 4, v%d" % V_Q)
    e("v_add_u32 v22, %d, v22" % LDS_ST)
    e("ds_read_b128 v[180:183], v22")
    e("ds_read_b128 v[184:187], v22 offset:64")
    e("s_mov_b32 s25, 0x%x" % OFF_XP)
    e("s_nop 4")
    e("s_waitcnt lgkmcnt(0)")
    for mb in range(2):
        for nb in range(3):
            lo=ACC+(mb*3+nb)*4; hi=lo+24
            for r in range(4): e("v_fma_f32 v%d, v%d, v%d, v%d" % (lo+r, hi+r, V_SG+nb, lo+r))
            for r in range(4): e("v_mul_f32 v%d, v%d, v%d" % (lo+r, lo+r, 180+mb*4+r))
            e("v_cvt_pk_bf16_f32 v%d, v%d, v%d" % (hi, lo, lo+1))
            e("v_cvt_pk_bf16_f32 v%d, v%d, v%d" % (hi+1, lo+2, lo+3))
            e("buffer_store_dwordx2 %s, v%d, s[8:11], s25 offen offset:%d %s" % (vr(hi,2), V_SO+nb, mb*32, flags))
    e("s_endpgm")
    A.label("%s_stats" % name)
    if prefetch:
        e("s_getpc_b64 s[40:41]")
        A.label("%s_pc1" % name)
        e("s_add_u32 s40, s40, %s - %s_pc1" % (first,name)); e("s_addc_u32 s41, s41, 0")
        e("s_lshr_b32 s42, s2, 3"); e("s_and_b32 s42, s42, 7"); e("s_lshl_b32 s42, s42, 13")
        e("v_lshlrev_b32 v213, 7, v1")
        e("v_add_u32 v213, s42, v213")
        e("v_min_u32 v213, %s - %s - 4, v213" % (last, first))
        e("global_load_dword v212, v213, s[40:41]")
    e("s_cmp_lg_u32 s2, 0")
    e("s_cbranch_scc1 %s_nz" % name)
    e("v_lshlrev_b32 v213, 8, v1"); e("v_min_u32 v213, %d, v213" % (31*256)); e("v_mov_b32 v214, 0")
    e("s_mov_b32 s30, 0x%x" % OFF_CNT)
    e("buffer_store_dword v214, v213, s[8:11], s30 offen")
    e("s_waitcnt vmcnt(0)")
    A.label("%s_nz" % name)
    ntouch=0
    if tlb:
        e("v_lshlrev_b32 v213, 20, v1")
        e("v_min_u32 v213, 0x2600000, v213")
        e("buffer_load_dword v212, v213, s[8:11], 0 offen"); ntouch+=1
        e("s_load_dwordx2 s[52:53], s[0:1], 64")
        e("s_waitcnt lgkmcnt(0)")
        e("s_mov_b32 s48, s52"); e("s_mov_b32 s49, s53"); e("s_mov_b32 s50, %d" % (S*D*2)); e("s_mov_b32 s51, 0x20000")
        e("v_lshlrev_b32 v213, 20, v1"); e("v_min_u32 v213, %d, v213" % (S*D*2-4))
        e("buffer_load_dword v212, v213, s[48:51], 0 offen"); ntouch+=1
        e("s_mov_b32 s48, s46"); e("s_mov_b32 s49, s47"); e("s_mov_b32 s50, %d" % (D*F*2))
        e("v_lshlrev_b32 v213, 20, v1"); e("v_min_u32 v213, %d, v213" % (D*F*2-4))
        e("buffer_load_dword v212, v213, s[48:51], 0 offen"); ntouch+=1
    if wtouch:
        e("s_and_b32 s16, s2, 255")
        e("s_mul_i32 s30, s16, %d" % (162*128))
        for (lo,hi) in ((44,45),(46,47)):
            e("s_mov_b32 s48, s%d" % lo); e("s_mov_b32 s49, s%d" % hi); e("s_mov_b32 s50, %d" % (D*F*2)); e("s_mov_b32 s51, 0x20000")
            e("v_lshlrev_b32 v213, 7, v1")
            e("buffer_load_dword v212, v213, s[48:51], s30 offen"); ntouch+=1
            e("v_add_u32 v213, 0x2000, v213")
            e("buffer_load_dword v212, v213, s[48:51], s30 offen"); ntouch+=1
            e("v_min_u32 v213, 33, v1"); e("v_add_u32 v213, 128, v213"); e("v_lshlrev_b32 v213, 7, v213")
            e("buffer_load_dword v212, v213, s[48:51], s30 offen"); ntouch+=1
    e("v_mov_b32 v72, 0x3f803f80"); e("v_mov_b32 v73, 0x3f803f80"); e("v_mov_b32 v74, 0x3f803f80"); e("v_mov_b32 v75, 0x3f803f80")
    e("s_waitcnt vmcnt(%d)" % (ntouch+(1 if prefetch else 0)))
    e("s_barrier")
    groups=[(mb,p) for mb in range(2) for p in range(3)]
    def rd(gi):
        mb,p=groups[gi]
        for kk in range(6*p,6*p+6):
            v=V_BO if kk&1 else V_BE
            e("ds_read_b128 %s, v%d offset:%d" % (vr(80+(gi%3)*24+(kk-6*p)*4,4), v, (kk>>1)*4096+mb*2048))
    rd(0); rd(1)
    for gi in range(6):
        mb,p=groups[gi]
        e("s_waitcnt lgkmcnt(%d)" % (6 if gi<5 else 0))
        for kk in range(6):
            a=vr(80+(gi%3)*24+kk*4,4)
            first=(p==0 and kk==0)
            e("v_mfma_f32_16x16x32_bf16 %s, %s, %s, %s" % (vr(24+mb*8,4), a, a, "0" if first else vr(24+mb*8,4)))
            e("v_mfma_f32_16x16x32_bf16 %s, %s, %s, %s" % (vr(28+mb*8,4), a, vr(72,4), "0" if first else vr(28+mb*8,4)))
        if gi+2<6: rd(gi+2)
    e("s_nop 7"); e("s_nop 1")
    e("v_and_b32 v22, 3, v1")
    for mb in range(2):
        g=24+mb*8; sx=28+mb*8
        o=40+mb*4
        e("v_cmp_eq_u32 vcc, 1, v22"); e("s_nop 1")
        e("v_cndmask_b32 v%d, v%d, v%d, vcc" % (o, g, g+1)); e("v_cndmask_b32 v%d, v%d, v%d, vcc" % (o+1, sx, sx+1))
        e("v_cmp_eq_u32 vcc, 2, v22"); e("s_nop 1")
        e("v_cndmask_b32 v%d, v%d, v%d, vcc" % (o, o, g+2)); e("v_cndmask_b32 v%d, v%d, v%d, vcc" % (o+1, o+1, sx+2))
        e("v_cmp_eq_u32 vcc, 3, v22"); e("s_nop 1")
        e("v_cndmask_b32 v%d, v%d, v%d, vcc" % (o, o, g+3)); e("v_cndmask_b32 v%d, v%d, v%d, vcc" % (o+1, o+1, sx+3))
        e("v_mul_f32 v%d, %s, v%d" % (o+1, fhex(1.0/576.0), o+1))
        e("v_mul_f32 v%d, %s, v%d" % (o, fhex(1.0/576.0), o))
        e("v_fma_f32 v%d, -v%d, v%d, v%d" % (o, o+1, o+1, o))
        e("v_max_f32 v%d, 0, v%d" % (o, o))
        e("v_add_f32 v%d, %s, v%d" % (o, fhex(1e-5), o))
        e("v_rsq_f32 v%d, v%d" % (o, o))
    e("v_lshrrev_b32 v23, 2, v%d" % V_L15)
    e("v_lshlrev_b32 v50, 2, v%d" % V_L15)
    e("v_add_u32 v51, %d, v50" % LDS_ST)
    e("s_lshl_b32 s21, s17, 7")
    e("s_add_u32 s21, s21, 0x%x" % OFF_MEAN)
    e("v_cmp_eq_u32 vcc, v23, v%d" % V_Q)
    e("s_and_saveexec_b64 s[28:29], vcc")
    e("ds_write_b32 v51, v40")
    e("ds_write_b32 v51, v44 offset:64")
    e("s_cmp_lg_u32 s19, 0")
    e("s_cbranch_scc1 %s_nomean" % name)
    e("buffer_store_dword v41, v50, s[8:11], s21 offen %s" % flags)
    e("buffer_store_dword v45, v50, s[8:11], s21 offen offset:64 %s" % flags)
    A.label("%s_nomean" % name)
    e("s_mov_b64 exec, s[28:29]")
    e("s_waitcnt lgkmcnt(0)")
    e("s_barrier")
    e("s_endpgm")
    A.label("%s_wt" % name)
    if w1:
        e("s_cmp_ge_u32 s2, %d" % (256+NT_WT))
        e("s_cbranch_scc1 %s_swz" % name)
    e("s_sub_u32 s16, s2, 256")
    e("s_waitcnt lgkmcnt(0)")
    e("s_mov_b32 s8, s4"); e("s_mov_b32 s9, s5"); e("s_mov_b32 s10, 0x%x" % WS_BYTES); e("s_mov_b32 s11, 0x20000")
    e("s_mov_b32 s12, s36"); e("s_mov_b32 s13, s37"); e("s_mov_b32 s14, %d" % (S*289*2)); e("s_mov_b32 s15, 0x20000")
    e("s_mov_b32 s24, s38"); e("s_mov_b32 s25, s39")
    emit_wt_role2(A,16,flags)
    if w1:
        e("s_endpgm")
        A.label("%s_swz" % name)
        e("s_sub_u32 s16, s2, %d" % (256+NT_WT))
        e("s_waitcnt lgkmcnt(0)")
        e("s_mov_b32 s8, s4"); e("s_mov_b32 s9, s5"); e("s_mov_b32 s10, 0x%x" % WS_BYTES); e("s_mov_b32 s11, 0x20000")
        e("s_mov_b32 s12, s44"); e("s_mov_b32 s13, s45"); e("s_mov_b32 s14, %d" % (D*F*2)); e("s_mov_b32 s15, 0x20000")
        emit_w1_role2(A,16,swzflags)
    A.label("%s_end" % name)
    e("s_endpgm")
    kd=KD_FMT.format(name=name, vgpr=216, sgpr=64, accum=216)
    return A.text(), kd, 37888, 256+NT_WT+nsw

if __name__=="__main__":
    import sys
    t,kd,lds,grid=gen_k1()
    hdr="; @launch kernel=k1_kernel grid=(%d,1,1) block=(256,1,1) lds=%d\n" % (grid,lds)
    open(sys.argv[1],"w").write(hdr+'.amdgcn_target "amdgcn-amd-amdhsa--gfx950"\n.text\n'+t+'.section .rodata,"a"\n'+kd)
```

```python
from asmlib import *
from layout import *
import math

def gen_k4(name="k4_kernel", P=5, P0=2, store_flags="sc1", dbg_time=False, warm=False, gelu_end=89, gelu_start=None, stage=True, mapA='B', ext=True, PD=11, PD0=8, PDN=50, PDS=10, balance=True, ctrans=8, cvm=8, cds=4, ldflags='sc1', fuse=True, spin=4000, gfree=None, nostores=False, stamp_steps=(0,12,24,36,54,72,90)):
    A=Asm(); e=A.e
    if gelu_start is None: gelu_start = 18 if G1SEQ else 30
    if gfree is None: gfree = (44,67,90) if G1SEQ else (51,71,90)
    V_LANE=1; V_L16=2
    V_AE,V_AO,V_AE8,V_AO8,V_HE,V_HO,V_HE8,V_HO8 = 3,4,5,6,7,8,9,10
    V_WA=11; V_GE,V_GO,V_GE8,V_GO8 = 14,15,16,17
    V_RSTD=18; V_BIAS=22; V_BRAW=34; V_C1=52; V_C2=53
    V_X=54; V_T=58; V_PK=62; V_GRAM=68; V_ST=72
    ACC=[80,128,176]
    T=224
    A_RING=0; A_ACT=12*P; A_GR=A_ACT+32; A_DUMMY=A_GR+8; A_D=A_DUMMY+4
    A_D=(A_D+3)//4*4
    NAGPR=A_D+144
    assert NAGPR<=256, NAGPR
    LDS_H=73728; LDS_RSTD=147456
    vm=VQ("vm",63); lg=VQ("lgkm",15)
    stamps=[]
    def stamp(nm):
        if not dbg_time: return
        i=len(stamps); stamps.append(nm)
        A.e("s_memtime s[%d:%d]" % (44+2*i,45+2*i))
    A.raw(".globl %s\n.p2align 8\n.type %s,@function\n%s:" % (name,name,name))
    e("s_cmp_ge_u32 s2, 256")
    e("s_cbranch_scc1 %s_end" % name)
    e("s_load_dwordx2 s[4:5], s[0:1], 80")
    e("s_load_dwordx2 s[6:7], s[0:1], 40")
    if fuse:
        e("s_load_dwordx4 s[32:35], s[0:1], 56")
    stamp("start")
    e("v_and_b32 v%d, 63, v0" % V_LANE)
    e("v_lshrrev_b32 v%d, 6, v0" % T)
    if mapA=="B":
        e("s_lshr_b32 s31, s2, 3")
        e("s_and_b32 s16, s31, 7")
        e("s_and_b32 s17, s2, 7"); e("s_lshl_b32 s17, s17, 2"); e("s_lshr_b32 s19, s2, 6"); e("s_add_u32 s17, s17, s19")
    elif mapA:
        e("s_lshr_b32 s31, s2, 3")
        e("s_and_b32 s16, s2, 3"); e("s_lshl_b32 s16, s16, 1"); e("s_and_b32 s17, s31, 1"); e("s_add_u32 s16, s16, s17")
        e("s_bfe_u32 s17, s2, 0x10002"); e("s_lshl_b32 s17, s17, 4"); e("s_lshr_b32 s19, s31, 1"); e("s_add_u32 s17, s17, s19")
    else:
        e("s_and_b32 s16, s2, 7")
        e("s_lshr_b32 s17, s2, 3")
    e("v_readfirstlane_b32 s18, v%d" % T)
    e("v_lshlrev_b32 v%d, 4, v%d" % (V_L16, V_LANE))
    e("v_lshrrev_b32 v%d, 4, v%d" % (T+2, V_LANE))
    e("v_lshrrev_b32 v%d, 3, v%d" % (T+9, V_LANE))
    e("s_lshl_b32 s19, s18, 4")
    e("v_add_u32 v%d, s19, v%d" % (T+9, T+9))
    e("s_movk_i32 s23, 1152")
    e("v_mul_lo_u32 v%d, v%d, s23" % (T+9, T+9))
    e("v_and_b32 v%d, 7, v%d" % (T+10, V_LANE))
    e("v_xor_b32 v%d, v%d, v%d" % (T+11, T+10, T+2))
    e("v_xor_b32 v%d, 4, v%d" % (T+12, T+11))
    e("v_lshl_add_u32 v%d, v%d, 4, v%d" % (T+11, T+11, T+9))
    e("v_lshl_add_u32 v%d, v%d, 4, v%d" % (T+12, T+12, T+9))
    e("v_add_u32 v%d, %d, v%d" % (T+12, 8*1152, T+12))
    e("s_mul_i32 s23, s17, %d" % (64*1152))
    e("s_add_u32 s23, s23, 0x%x" % OFF_HC)
    e("s_lshl_b32 s24, s18, 11")
    e("s_lshl_b32 s25, s16, 2"); e("s_add_u32 s25, s25, s18"); e("s_mul_i32 s25, s25, 165888")
    e("s_add_u32 s20, s25, 0x%x" % OFF_W1S)
    e("s_add_u32 s21, s25, 0x%x" % OFF_W2S)
    e("s_waitcnt lgkmcnt(0)")
    stamp("karg")
    e("s_mov_b32 s8, s4"); e("s_mov_b32 s9, s5"); e("s_mov_b32 s10, 0x%x" % WS_BYTES); e("s_mov_b32 s11, 0x20000")
    dma_ids={}
    def dma(cb,g):
        L=["s_add_u32 m0, s24, %d" % (cb*8192 + g*1024),
           ("s_add_u32 s23, s23, 128" if (g==0 and cb>0) else "s_nop 0"),
           ("vmid", "buffer_load_dwordx4 v%d, s[8:11], s23 offen lds" % (T+11+g), dma_ids, (cb,g))]
        return L
    def emit_filler(f):
        if isinstance(f,str): e(f)
        elif f[0]=="call":
            s=f[1]()
            if s: e(s)
        elif f[0]=="lds": e(f[1]); lg.issue()
        elif f[0]=="vm": e(f[1]); vm.issue()
        elif f[0]=="vmid": e(f[1]); f[2][f[3]]=vm.issue()
        elif f[0]=="grp":
            for g in f[1]: emit_filler(g)
    ncb0 = 3 if stage else 9
    for cb in range(ncb0):
        for g in range(2):
            for f in dma(cb,g): emit_filler(f)
    ring_ids={}
    gfree=list(gfree)
    pools=[]
    for k in range(P): pools.append(["a", A_RING+12*k, -1, 999])
    for cc in range(3):
        for k in range(4): pools.append(["a", A_D+cc*48+12*k, -1, 54+6*cc])
    for c,fr in ((0,gfree[0]),(1,gfree[1]),(2,gfree[2])):
        for k in range(4): pools.append(["v", ACC[c]+12*k, fr, 999])
    slot_free=[p[2] for p in pools]
    slot_of={}; issue_at={}
    def plan():
        t=-1; cnt={}
        for n in range(108):
            pd=PD if PD0 is None else (PD0 if n<PDN else min(PD, PD0+(n-PDN)//PDS+1))
            want=max(n-pd, -1 if n<P0 else 0)
            if n<P0: want=-1
            tt=max(want, issue_at.get(n-1,-1))
            while True:
                if tt>=0 and cnt.get(tt,0)>=2: tt+=1; continue
                cand=[i for i,p in enumerate(pools) if slot_free[i]<=tt and p[3]>n]
                if cand: break
                tt+=1
                assert tt<=n-1, ("no slot", n, tt)
            i=min(cand,key=lambda i:(pools[i][3],i))
            slot_of[n]=i; issue_at[n]=tt; cnt[tt]=cnt.get(tt,0)+1
            slot_free[i]=n+1
            assert tt<n or n<P0, (n,tt)
    plan()
    print("prefetch distance: min %d, by phase" % min(n-issue_at[n] for n in range(P0,100)), [n-issue_at[n] for n in (10,30,50,56,62,70,80,95,107)])
    def wreg_of(t, mb):
        p=pools[slot_of[t]]
        return (ar if p[0]=="a" else vr)(p[1]+mb*4,4)
    def issue_w(t, mb):
        e("buffer_load_dwordx4 %s, v%d, s[8:11], s20 offen offset:%d" % (wreg_of(t,mb), V_L16, mb*1024))
        ring_ids[(t,mb)]=vm.issue()
    def adv_w(t):
        if t+1==54: e("s_mov_b32 s20, s21")
        else: e("s_add_u32 s20, s20, 3072")
    for t in range(P0):
        for mb in range(3): issue_w(t,mb)
        adv_w(t)
    nxt=[P0]
    stamp("issued")
    e("s_mov_b32 s12, s6"); e("s_mov_b32 s13, s7"); e("s_mov_b32 s14, %d" % (F*2)); e("s_mov_b32 s15, 0x20000")
    e("v_and_b32 v%d, 15, v%d" % (T+1, V_LANE))
    e("v_lshrrev_b32 v%d, 1, v%d" % (T+3, T+1))
    e("v_xor_b32 v%d, v%d, v%d" % (T+4, T+2, T+3))
    e("v_lshlrev_b32 v%d, 4, v%d" % (T+4, T+4))
    e("v_lshl_add_u32 v%d, v%d, 7, v%d" % (V_AE, T+1, T+4))
    e("v_xor_b32 v%d, 64, v%d" % (V_AO, V_AE))
    e("v_add_u32 v%d, 0x10000, v%d" % (V_AE8, V_AE))
    e("v_add_u32 v%d, 0x10000, v%d" % (V_AO8, V_AO))
    e("v_add_u32 v%d, %d, v%d" % (V_HE, LDS_H, V_AE))
    e("v_add_u32 v%d, %d, v%d" % (V_HO, LDS_H, V_AO))
    e("v_add_u32 v%d, %d, v%d" % (V_HE8, LDS_H+0x10000, V_AE))
    e("v_add_u32 v%d, %d, v%d" % (V_HO8, LDS_H+0x10000, V_AO))
    e("v_add_u32 v%d, s24, v%d" % (V_GE, V_AE))
    e("v_add_u32 v%d, s24, v%d" % (V_GO, V_AO))
    e("v_add_u32 v%d, s24, v%d" % (V_GE8, V_AE8))
    e("v_add_u32 v%d, s24, v%d" % (V_GO8, V_AO8))
    e("s_mul_i32 s19, s18, 6")
    e("v_lshrrev_b32 v%d, 1, v%d" % (T+5, T+2))
    e("v_add_u32 v%d, s19, v%d" % (T+5, T+5))
    e("v_and_b32 v%d, 1, v%d" % (T+6, T+2))
    e("v_lshlrev_b32 v%d, 3, v%d" % (T+6, T+6))
    e("v_lshl_add_u32 v%d, v%d, 7, v%d" % (T+6, T+1, T+6))
    e("v_add_u32 v%d, %d, v%d" % (T+6, LDS_H, T+6))
    for mb in range(3):
        e("v_add_u32 v%d, %d, v%d" % (T+7, 2*mb, T+5))
        e("v_lshrrev_b32 v%d, 3, v%d" % (T+8, T+7))
        e("v_and_b32 v%d, 7, v%d" % (T+7, T+7))
        e("v_xor_b32 v%d, v%d, v%d" % (T+7, T+7, T+3))
        e("v_lshlrev_b32 v%d, 4, v%d" % (T+7, T+7))
        e("v_lshl_add_u32 v%d, v%d, 13, v%d" % (T+7, T+8, T+7))
        e("v_add_u32 v%d, v%d, v%d" % (V_WA+mb, T+7, T+6))
    c1 = 2.0*math.sqrt(2.0/math.pi)*math.log2(math.e); c2 = c1*0.044715
    kap_=c2**(1.0/3.0)
    e("v_mov_b32 v%d, %s" % (V_C1, fhex(c1/kap_)))
    e("v_mov_b32 v%d, %s" % (V_C2, fhex(kap_)))
    e("s_lshl_b32 s25, s16, 5"); e("s_add_u32 s25, s25, s17"); e("s_lshl_b32 s25, s25, 2"); e("s_add_u32 s25, s25, s18")
    e("s_mul_i32 s25, s25, 18432")
    e("s_add_u32 s22, s25, 0x%x" % OFF_PART)
    e("v_lshlrev_b32 v%d, 3, v%d" % (T+13, T+2))
    e("s_mul_i32 s25, s16, 1152"); e("s_mul_i32 s26, s18, 288"); e("s_add_u32 s30, s25, s26")
    extra={t:[] for t in range(108)}
    if stage:
        for cb in range(3,9):
            if G1SEQ:
                st=(cb-3) if cb<6 else (cb-3)
                for g in range(2): extra[st].append(("grp", dma(cb,g)))
            else:
                st=2*(cb-3)
                for g in range(2): extra[st+g].append(("grp", dma(cb,g)))
    bias_ids={}
    for c in range(3):
        for mb in range(3):
            extra[(7+c) if G1SEQ else (12+2*c)].append(("vmid","buffer_load_dwordx2 %s, v%d, s[12:15], s30 offen offset:%d" % (vr(V_BRAW+(c*3+mb)*2,2), T+13, c*96+mb*32), bias_ids,(c,mb)))
    if warm:
        if mapA:
            L=["s_mul_i32 s26, s18, 81", "v_add_u32 v%d, s26, v%d" % (T+14, V_LANE), "v_lshlrev_b32 v%d, 7, v%d" % (T+14, T+14),
               "s_and_b32 s25, s2, 3", "s_mul_i32 s25, s25, %d" % (2*663552), "s_mul_i32 s26, s31, %d" % (324*128), "s_add_u32 s25, s25, s26",
               "s_add_u32 s27, s25, 0x%x" % OFF_W2S, ("vm","buffer_load_dword a%d, v%d, s[8:11], s27 offen" % (A_DUMMY+1, T+14)),
               "v_min_u32 v%d, 16, v%d" % (T+15, V_LANE), "s_mul_i32 s26, s18, 81", "s_add_u32 s26, s26, 64", "v_add_u32 v%d, s26, v%d" % (T+15, T+15), "v_lshlrev_b32 v%d, 7, v%d" % (T+15, T+15),
               ("vm","buffer_load_dword a%d, v%d, s[8:11], s27 offen" % (A_DUMMY+2, T+15))]
        else:
            L=["s_lshl_b32 s26, s18, 6", "v_add_u32 v%d, s26, v%d" % (T+14, V_LANE), "v_min_u32 v%d, 161, v%d" % (T+14, T+14),
               "v_lshlrev_b32 v%d, 7, v%d" % (T+14, T+14), "s_mul_i32 s25, s16, 663552", "s_mul_i32 s26, s17, 20736", "s_add_u32 s25, s25, s26",
               "s_add_u32 s27, s25, 0x%x" % OFF_W2S, ("vm","buffer_load_dword a%d, v%d, s[8:11], s27 offen" % (A_DUMMY+1, T+14))]
        extra[19]+=L
    e(waitcnt(vm=vm.need(dma_ids[(ncb0-1,1)])))
    stamp("dma_done")
    e("s_barrier")
    act_ids={}
    def step_info(t):
        if G1SEQ and t<54: return ("g1", t%18, ACC[t//18], t%18==0, False)
        if t<36:
            kap=t//12; c=(t%12)//6; ks=6*kap+t%6
            return ("g1", ks, ACC[c], ks==0, False)
        if t<54: return ("g1", t-36, ACC[2], t==36, False)
        u=t-54; kap=u//18; cc=(u%18)//6; ksl=u%6
        return ("g2", 6*kap+ksl, A_D+cc*48, kap==0 and ksl==0, True)
    def gram_step(t):
        if G1SEQ: return t<18
        return t<36 and (t%12)<6
    TSTAT = 17 if G1SEQ else 29
    DMAB = (5,11) if G1SEQ else (11,23)
    def issue_act(t, nb):
        kind,ks,_,_,_=step_info(t)
        cb=ks>>1; odd=ks&1
        regs=(V_AE,V_AO,V_AE8,V_AO8) if kind=="g1" else (V_HE,V_HO,V_HE8,V_HO8)
        v,off=(regs[odd], cb*8192+nb*2048) if cb<8 else (regs[2+odd], nb*2048)
        e("ds_read_b128 %s, v%d offset:%d" % (ar(A_ACT+(t&1)*16+nb*4,4), v, off))
        act_ids[(t,nb)]=lg.issue()
    gr_ids={}
    def issue_gr(t):
        ks=step_info(t)[1]
        cb=ks>>1; odd=ks&1
        v,off=((V_GE,V_GO)[odd], cb*8192) if cb<8 else ((V_GE8,V_GO8)[odd], 0)
        e("ds_read_b128 %s, v%d offset:%d" % (ar(A_GR+(t&1)*4,4), v, off))
        gr_ids[t]=lg.issue()
    for nb in range(4): issue_act(0,nb)
    issue_gr(0)

    def gelu_fillers(c, acc):
        L=[("call", lambda c=c: waitcnt(vm=vm.need(bias_ids[(c,2)])))]
        for mb in range(3):
            raw=V_BRAW+(c*3+mb)*2; b=V_BIAS+mb*4
            L+=["v_lshlrev_b32 v%d, 16, v%d" % (b+0, raw), "v_and_b32 v%d, 0xffff0000, v%d" % (b+1, raw),
                "v_lshlrev_b32 v%d, 16, v%d" % (b+2, raw+1), "v_and_b32 v%d, 0xffff0000, v%d" % (b+3, raw+1)]
            for r in range(4): L.append("v_mul_f32 v%d, v%d, v%d" % (b+r, V_C2, b+r))
        k=0
        for mb in range(3):
            for nb in range(4):
                a=acc+(mb*4+nb)*4; b=V_BIAS+mb*4; pkr=V_PK+(k&1)*2; k+=1
                for r in range(4): L.append("v_fma_f32 v%d, v%d, v%d, v%d" % (V_X+r, a+r, V_RSTD+nb, b+r))
                for r in range(4): L.append("v_fma_f32 v%d, v%d, v%d, v%d" % (V_T+r, V_X+r, V_X+r, V_C1))
                for r in range(4): L.append("v_mul_f32 v%d, v%d, v%d" % (V_T+r, V_X+r, V_T+r))
                for r in range(4): L.append("v_exp_f32_e64 v%d, -v%d" % (V_T+r, V_T+r))
                for r in range(4): L.append("v_fma_f32 v%d, v%d, v%d, v%d" % (V_T+r, V_T+r, V_C2, V_C2))
                for r in range(4): L.append("v_rcp_f32 v%d, v%d" % (V_T+r, V_T+r))
                for r in range(4): L.append("v_mul_f32 v%d, v%d, v%d" % (V_X+r, V_X+r, V_T+r))
                L.append("v_cvt_pk_bf16_f32 v%d, v%d, v%d" % (pkr, V_X, V_X+1))
                L.append("v_cvt_pk_bf16_f32 v%d, v%d, v%d" % (pkr+1, V_X+2, V_X+3))
                L.append(("lds", "ds_write_b64 v%d, %s offset:%d" % (V_WA+mb, vr(pkr,2), c*24576+nb*2048)))
        return L
    def store_fillers(cc):
        L=[]
        acc=A_D+cc*48
        for jj in range(6):
            st=V_ST+(jj&1)*4
            for tt in range(2):
                a=acc+(2*jj+tt)*4
                for r in range(4): L.append("v_accvgpr_read_b32 v%d, a%d" % (V_X+tt*4+r, a+r))
            for tt in range(2):
                L.append("v_cvt_pk_bf16_f32 v%d, v%d, v%d" % (st+2*tt, V_X+tt*4, V_X+tt*4+1))
                L.append("v_cvt_pk_bf16_f32 v%d, v%d, v%d" % (st+2*tt+1, V_X+tt*4+2, V_X+tt*4+3))
            if not nostores: L.append(("vm", "buffer_store_dwordx4 %s, v%d, s[8:11], s22 offen %s" % (vr(st,4), V_L16, store_flags)))
            L.append("s_add_u32 s22, s22, 1024")
        return L
    def stats_fillers():
        L=[]; g=V_GRAM
        L+=["v_and_b32 v%d, 3, v%d" % (T+20, V_LANE), "v_cmp_eq_u32 vcc, 1, v%d" % (T+20), "s_nop 1",
            "v_cndmask_b32 v%d, v%d, v%d, vcc" % (T+21, g, g+1), "v_cmp_eq_u32 vcc, 2, v%d" % (T+20), "s_nop 1",
            "v_cndmask_b32 v%d, v%d, v%d, vcc" % (T+21, T+21, g+2), "v_cmp_eq_u32 vcc, 3, v%d" % (T+20), "s_nop 1",
            "v_cndmask_b32 v%d, v%d, v%d, vcc" % (T+21, T+21, g+3),
            "v_mov_b32 v%d, %s" % (T+22, fhex(1e-5)), "v_fmac_f32 v%d, %s, v%d" % (T+22, fhex(1.0/576.0), T+21),
            "v_rsq_f32 v%d, v%d" % (T+22, T+22), "v_lshrrev_b32 v%d, 2, v%d" % (T+23, T+1), "v_mul_f32 v%d, v%d, v%d" % (T+22, V_C2, T+22), "s_lshl_b32 s19, s18, 6",
            "v_lshlrev_b32 v%d, 2, v%d" % (T+24, T+1), "v_add_u32 v%d, s19, v%d" % (T+24, T+24),
            "v_add_u32 v%d, %d, v%d" % (T+24, LDS_RSTD, T+24), "v_cmp_eq_u32 vcc, v%d, v%d" % (T+23, T+2),
            "s_and_saveexec_b64 s[28:29], vcc", ("lds", "ds_write_b32 v%d, v%d" % (T+24, T+22)), "s_mov_b64 exec, s[28:29]"]
        return L

    rst=[None]
    g0=gelu_fillers(0,ACC[0]); g0.insert(25,("call", lambda: waitcnt(lgkm=lg.need(rst[0]))))
    g1=gelu_fillers(1,ACC[1]); g2=gelu_fillers(2,ACC[2])
    gq=g0+g1+g2
    ng=len(gq); gb=[0,len(g0),len(g0)+len(g1),ng]
    gpos=0
    gdone={}
    sq=[]
    rstd_id=None
    for t in range(108):
        kind,ks,acc,first,isA=step_info(t)
        if t in stamp_steps: stamp("t%d" % t)
        bar = t in (DMAB+(TSTAT+1,53,71,89) if stage else (TSTAT+1,53,71,89))
        nv=vm.need(ring_ids[(t,2)])
        if stage and t in DMAB:
            cb=5 if t==DMAB[0] else 8
            n2=vm.need(dma_ids[(cb,1)])
            if n2 is not None: nv = n2 if nv is None else min(nv,n2)
        if bar: lg.drain(); nl=0
        else:
            last=act_ids[(t,3)]
            if gram_step(t): last=max(last, gr_ids[t])
            nl=lg.need(last)
        w=waitcnt(vm=nv, lgkm=nl)
        if w: e(w)
        if bar: e("s_barrier")
        if t==TSTAT+1:
            e("v_lshlrev_b32 v%d, 2, v%d" % (T+25, T+1))
            e("v_add_u32 v%d, %d, v%d" % (T+25, LDS_RSTD, T+25))
            for nb in range(4):
                e("ds_read_b32 v%d, v%d offset:%d" % (V_RSTD+nb, T+25, nb*64)); rst[0]=lg.issue()
        mine=list(extra[t])
        if gelu_start<=t<gelu_end:
            target=ng*(t-gelu_start+1)//(gelu_end-gelu_start)
            lim = gb[0 if t<TSTAT+1 else 1 if t<36 else 2 if t<54 else 3]
            target=min(target,lim)
            g=gq[gpos:target]
            mine+=g; gpos=max(gpos,target)
            for c in range(3):
                if gpos>=gb[c+1] and c not in gdone: gdone[c]=t
        if t in (96,102): sq=store_fillers(0 if t==96 else 1)
        if sq:
            left = (102-t) if t<102 else (108-t)
            n=-(-len(sq)//left); mine+=sq[:n]; sq=sq[n:]
        todo=[n for n in range(P0,108) if issue_at[n]==t]
        def fcost(f):
            if isinstance(f,str):
                op=f.split()[0]
                if op.startswith(("v_exp","v_rcp","v_rsq")): return ctrans
                return 4
            if f[0]=="call": return 4
            if f[0]=="lds": return 6
            if f[0] in ("vm","vmid"): return cvm
            if f[0]=="grp": return sum(fcost(g) for g in f[1])
            if f[0]=="fn": return f[2]
        mem=[]
        if t+1<108:
            for nb in range(4): mem.append(("fn", (lambda t=t,nb=nb: issue_act(t+1,nb)), cds))
        if t+1<36 and gram_step(t+1): mem.append(("fn", (lambda t=t: issue_gr(t+1)), cds))
        wl=[]
        for n in todo:
            for mb in range(3):
                wl.append(("fn", (lambda n=n,mb=mb: issue_w(n,mb)), cvm))
            wl.append(("fn", (lambda n=n: adv_w(n)), 4))
        memq=[]
        a=list(mem); b=list(wl)
        while a or b:
            if a: memq.append(a.pop(0))
            if b: memq.append(b.pop(0))
        if not balance:
            memq=None
        total=sum(fcost(f) for f in mine)+(sum(fcost(f) for f in memq) if memq is not None else 0)+(8 if gram_step(t) else 0)
        if balance:
            nm=len(memq)
            span=10 if nm>8 else 9
            mpos=[min(11,(k*span)//max(1,nm)) for k in range(nm)]
            cum=0; pos=0; mi=0
            for i in range(12):
                mb=i//4; nb=i%4
                wreg=wreg_of(t,mb); areg=ar(A_ACT+(t&1)*16+nb*4,4)
                d=ar(acc+i*4,4) if isA else vr(acc+i*4,4)
                e("v_mfma_f32_16x16x32_bf16 %s, %s, %s, %s" % (d, wreg, areg, "0" if first else d))
                if i==4 and gram_step(t):
                    g=ar(A_GR+(t&1)*4,4)
                    e("v_mfma_f32_16x16x32_bf16 %s, %s, %s, %s" % (vr(V_GRAM,4), g, g, "0" if t==0 else vr(V_GRAM,4)))
                    cum+=8
                while mi<nm and mpos[mi]<=i:
                    memq[mi][1](); cum+=memq[mi][2]; mi+=1
                tgt=total*(i+1)/12.0
                while pos<len(mine) and (i==11 or cum+fcost(mine[pos])/2.0<=tgt):
                    cum+=fcost(mine[pos]); emit_filler(mine[pos]); pos+=1
            assert pos==len(mine) and mi==nm
        else:
            per=[len(mine)*(i+1)//12 - len(mine)*i//12 for i in range(12)]
            pos=0
            for i in range(12):
                mb=i//4; nb=i%4
                wreg=wreg_of(t,mb); areg=ar(A_ACT+(t&1)*16+nb*4,4)
                d=ar(acc+i*4,4) if isA else vr(acc+i*4,4)
                e("v_mfma_f32_16x16x32_bf16 %s, %s, %s, %s" % (d, wreg, areg, "0" if first else d))
                if i<4 and t+1<108: issue_act(t+1,i)
                if i==4 and gram_step(t):
                    g=ar(A_GR+(t&1)*4,4)
                    e("v_mfma_f32_16x16x32_bf16 %s, %s, %s, %s" % (vr(V_GRAM,4), g, g, "0" if t==0 else vr(V_GRAM,4)))
                if i==5 and t+1<36 and gram_step(t+1): issue_gr(t+1)
                if len(todo)==2 and i<3:
                    issue_w(todo[0], i)
                    if i==2: adv_w(todo[0])
                if todo and nb==3:
                    issue_w(todo[-1], mb)
                    if mb==2: adv_w(todo[-1])
                for f in mine[pos:pos+per[i]]: emit_filler(f)
                pos+=per[i]
        if t==TSTAT:
            e("s_nop 7")
            for f in stats_fillers(): emit_filler(f)
    assert gpos==ng and not sq, (gpos,ng,len(sq))
    for c in range(3): assert gdone[c]<gfree[c], (gdone,gfree)
    assert gdone[0]<53 and gdone[1]<71 and gdone[2]<89, gdone
    print("gelu chunk done at steps", gdone)
    e("s_nop 7")
    for f in store_fillers(2): emit_filler(f)
    if fuse:
        stamp("stores_issued")
        LDS_MASK=LDS_RSTD+256
        e("s_waitcnt vmcnt(0)")
        e("s_barrier")
        stamp("drained")
        e("s_lshl_b32 s25, s17, 8"); e("s_add_u32 s25, s25, 0x%x" % OFF_CNT)
        e("s_lshl_b32 s26, 1, s16")
        e("s_cmp_lg_u32 s18, 0")
        e("s_cbranch_scc1 %s_wm" % name)
        e("s_mov_b64 exec, 1")
        e("v_mov_b32 v60, 0"); e("v_mov_b32 v61, 1")
        e("buffer_atomic_add v61, v60, s[8:11], s25 offen sc0")
        e("s_waitcnt vmcnt(0)")
        e("v_readfirstlane_b32 s27, v61")
        e("s_nop 3")
        e("s_and_b32 s28, s27, 0xff")
        e("s_cmp_eq_u32 s28, 7")
        e("s_cbranch_scc0 %s_spin0" % name)
        e("s_lshr_b32 s27, s27, 8"); e("s_and_b32 s27, s27, 0xff"); e("s_or_b32 s26, s26, s27")
        e("s_branch %s_pub" % name)
        A.label("%s_spin0" % name)
        e("s_mov_b32 s29, %d" % spin)
        A.label("%s_spin" % name)
        e("buffer_load_dword v61, v60, s[8:11], s25 offen sc1")
        e("s_waitcnt vmcnt(0)")
        e("v_readfirstlane_b32 s27, v61")
        e("s_nop 3")
        e("s_and_b32 s28, s27, 0xff")
        e("s_cmp_eq_u32 s28, 8")
        e("s_cbranch_scc1 %s_pub" % name)
        e("s_sub_u32 s29, s29, 1")
        e("s_cmp_lg_u32 s29, 0")
        e("s_cbranch_scc1 %s_spin" % name)
        e("s_lshl_b32 s27, s26, 8")
        e("v_mov_b32 v61, s27")
        e("buffer_atomic_or v61, v60, s[8:11], s25 offen sc0")
        e("s_waitcnt vmcnt(0)")
        e("v_readfirstlane_b32 s27, v61")
        e("s_nop 3")
        e("s_and_b32 s28, s27, 0xff")
        e("s_cmp_eq_u32 s28, 8")
        e("s_cselect_b32 s26, s26, 0")
        A.label("%s_pub" % name)
        e("v_mov_b32 v61, s26")
        e("v_mov_b32 v60, %d" % LDS_MASK)
        e("ds_write_b32 v60, v61")
        e("s_waitcnt lgkmcnt(0)")
        e("s_mov_b64 exec, -1")
        A.label("%s_wm" % name)
        e("s_barrier")
        e("v_mov_b32 v60, %d" % LDS_MASK)
        e("ds_read_b32 v61, v60")
        e("v_and_b32 v62, 15, v%d" % V_LANE); e("v_lshrrev_b32 v63, 4, v%d" % V_LANE)
        e("s_movk_i32 s27, 1152"); e("v_mul_lo_u32 v64, v62, s27"); e("v_lshl_add_u32 v64, v63, 3, v64")
        e("v_lshlrev_b32 v65, 2, v62")
        e("v_lshlrev_b32 v66, 3, v63")
        e("v_mov_b32 v68, 0x00003f80"); e("v_mov_b32 v69, 0x3f800000")
        e("s_mov_b32 s36, s32"); e("s_mov_b32 s37, s33"); e("s_mov_b32 s38, 1152"); e("s_mov_b32 s39, 0x20000")
        e("s_mov_b32 s40, s34"); e("s_mov_b32 s41, s35"); e("s_mov_b32 s42, %d" % (S*D*2)); e("s_mov_b32 s43, 0x20000")
        e("s_waitcnt lgkmcnt(0)")
        e("v_readfirstlane_b32 s26, v61")
        e("s_nop 3")
        stamp("mask")
        A.label("%s_loop" % name)
        e("s_cmp_eq_u32 s26, 0")
        e("s_cbranch_scc1 %s_done" % name)
        e("s_ff1_i32_b32 s27, s26"); e("s_bitset0_b32 s26, s27")
        e("s_mul_i32 s27, s27, 9"); e("s_add_u32 s27, s27, s18")
        def blk_loads(sg):
            R=80+40*sg
            e("s_mul_hi_u32 s28, s27, 0x%x" % ((2**32+17)//18)); e("s_mul_i32 s29, s28, 18"); e("s_sub_u32 s29, s27, s29")
            e("s_mul_hi_u32 s30, s29, 0x2aaaaaab"); e("s_mul_i32 s31, s30, 6"); e("s_sub_u32 s31, s29, s31")
            e("s_mul_i32 s28, s28, 144"); e("s_mul_i32 s30, s30, 48"); e("s_add_u32 s28, s28, s30")
            e("s_lshr_b32 s30, s31, 1"); e("s_lshl_b32 s30, s30, 4"); e("s_add_u32 s28, s28, s30")
            e("s_and_b32 s31, s31, 1"); e("s_lshl_b32 s31, s31, 5"); e("s_lshl_b32 s30, s17, 6"); e("s_add_u32 s31, s31, s30")
            e("s_mul_i32 s30, s17, 72"); e("s_add_u32 s30, s30, s27"); e("s_lshl_b32 s30, s30, 10"); e("s_add_u32 s30, s30, 0x%x" % OFF_PART)
            for jp in range(8):
                e("buffer_load_dwordx4 %s, v%d, s[8:11], s30 offen %s" % (vr(R+4*jp,4), V_L16, ldflags))
                if jp<7: e("s_add_u32 s30, s30, %d" % (S*D*2))
            so=80+4*sg
            e("s_mul_i32 s30, s31, 1152"); e("s_lshl_b32 s29, s28, 1"); e("s_add_u32 s%d, s30, s29" % so)
            e("s_add_u32 s%d, s%d, %d" % (so+1, so, 16*1152))
            e("s_add_u32 s30, s%d, 0x%x" % (so, OFF_HC))
            e("buffer_load_dwordx2 %s, v64, s[8:11], s30 offen" % vr(R+32,2))
            e("s_add_u32 s30, s%d, 0x%x" % (so+1, OFF_HC))
            e("buffer_load_dwordx2 %s, v64, s[8:11], s30 offen" % vr(R+34,2))
            e("s_lshl_b32 s30, s31, 2"); e("s_add_u32 s30, s30, 0x%x" % OFF_MEAN)
            e("buffer_load_dword v%d, v65, s[8:11], s30 offen" % (R+36))
            e("buffer_load_dword v%d, v65, s[8:11], s30 offen offset:64" % (R+37))
            e("buffer_load_dwordx2 %s, v66, s[36:39], s29 offen" % vr(R+38,2))
        def blk_sum(sg):
            R=80+40*sg; so=80+4*sg; a=208
            e("v_lshlrev_b32 v%d, 16, v%d" % (a+8, R+38)); e("v_and_b32 v%d, 0xffff0000, v%d" % (a+9, R+38))
            e("v_lshlrev_b32 v%d, 16, v%d" % (a+10, R+39)); e("v_and_b32 v%d, 0xffff0000, v%d" % (a+11, R+39))
            for jp in range(8):
                for i in range(4):
                    for hh in range(2):
                        c = (a+8+(i&1)*2+hh) if jp==0 else (a+2*i+hh)
                        e("v_dot2_f32_bf16 v%d, v%d, v%d, v%d" % (a+2*i+hh, R+4*jp+i, 68+hh, c))
            for i in range(4):
                for hh in range(2):
                    e("v_dot2_f32_bf16 v%d, v%d, v%d, v%d" % (a+2*i+hh, R+32+i, 68+hh, a+2*i+hh))
            for i in range(4):
                for hh in range(2):
                    e("v_add_f32 v%d, v%d, v%d" % (a+2*i+hh, a+2*i+hh, R+36+(i>>1)))
            for i in range(4): e("v_cvt_pk_bf16_f32 v%d, v%d, v%d" % (a+16+i, a+2*i, a+2*i+1))
            e("buffer_store_dwordx2 %s, v64, s[40:43], s%d offen" % (vr(a+16,2), so))
            e("buffer_store_dwordx2 %s, v64, s[40:43], s%d offen" % (vr(a+18,2), so+1))
        blk_loads(0)
        e("s_add_u32 s27, s27, 4")
        blk_loads(1)
        e("s_cmp_lg_u32 s18, 0")
        e("s_cbranch_scc1 %s_two" % name)
        e("s_add_u32 s27, s27, 4")
        blk_loads(2)
        e("s_waitcnt vmcnt(26)"); blk_sum(0)
        e("s_waitcnt vmcnt(15)"); blk_sum(1)
        e("s_waitcnt vmcnt(4)"); blk_sum(2)
        e("s_branch %s_loop" % name)
        A.label("%s_two" % name)
        e("s_waitcnt vmcnt(13)"); blk_sum(0)
        e("s_waitcnt vmcnt(2)"); blk_sum(1)
        e("s_branch %s_loop" % name)
        A.label("%s_done" % name)
    if dbg_time:
        if not fuse: stamp("stores_issued")
        e("s_waitcnt vmcnt(0)")
        stamp("end")
        e("s_waitcnt lgkmcnt(0)")
        e("s_mov_b32 s36, s4"); e("s_mov_b32 s37, s5"); e("s_mov_b32 s38, 0x%x" % WS_BYTES); e("s_mov_b32 s39, 0x20000")
        e("s_lshl_b32 s40, s2, 2"); e("s_add_u32 s40, s40, s18"); e("s_lshl_b32 s40, s40, 7"); e("s_add_u32 s40, s40, 0x4000000")
        e("v_mov_b32 v%d, 0" % (T+1))
        for i in range(len(stamps)):
            e("v_mov_b32 v%d, s%d" % (T, 44+2*i))
            e("buffer_store_dword v%d, v%d, s[36:39], s40 offen offset:%d" % (T, T+1, 4*i))
            e("s_nop 1")
        print("stamps:", stamps)
    A.label("%s_end" % name)
    e("s_endpgm")
    kd=KD_FMT.format(name=name, vgpr=256+NAGPR, sgpr=100, accum=256)
    return A.text(), kd, LDS_RSTD+512, 256
```

```python
from asmlib import *
from layout import *

def emit_swz_common(A, pitch, vbase=2):
    e=A.e
    V0,V1,VR=vbase,vbase+1,vbase+2
    t=vbase+3
    e("v_lshrrev_b32 v%d, 3, v1" % t)
    e("s_mov_b32 s40, %d" % pitch)
    e("v_mul_lo_u32 v%d, v%d, s40" % (t,t))
    e("v_bfe_u32 v%d, v1, 4, 1" % (t+1))
    e("v_lshlrev_b32 v%d, 1, v%d" % (t+1,t+1))
    e("v_and_b32 v%d, 7, v1" % (t+2))
    e("v_xor_b32 v%d, v%d, v%d" % (t+2,t+2,t+1))
    e("v_lshl_add_u32 v%d, v%d, 4, v%d" % (V0,t+2,t))
    e("v_xor_b32 v%d, 64, v%d" % (V1,V0))
    e("v_lshrrev_b32 v%d, 4, v1" % t)
    e("v_bfe_u32 v%d, v1, 2, 2" % (t+1))
    e("v_lshl_add_u32 v%d, v%d, 3, v%d" % (t+2,t,t+1))
    e("v_lshlrev_b32 v%d, 7, v%d" % (t+2,t+2))
    e("v_lshrrev_b32 v%d, 1, v%d" % (t+1,t+1))
    e("v_and_b32 v%d, 1, v%d" % (t,t))
    e("v_lshl_add_u32 v%d, v%d, 1, v%d" % (t,t,t+1))
    e("v_lshl_add_u32 v%d, v%d, 5, v%d" % (t+2,t,t+2))
    e("v_and_b32 v%d, 3, v1" % t)
    e("v_lshl_add_u32 v%d, v%d, 3, v%d" % (VR,t,t+2))
    return V0,V1,VR

def emit_swz_dma(A, V0, V1, srd, sSrc0, sSrc1, pitch, s_lds, ldsoff):
    e=A.e
    for i in range(4):
        src = sSrc0 if i<2 else sSrc1
        e("s_add_u32 m0, s%d, %d" % (s_lds, ldsoff+i*1024))
        if i&1: e("s_add_u32 s41, s%d, %d" % (src, 8*pitch))
        else: e("s_mov_b32 s41, s%d" % src)
        e("buffer_load_dwordx4 v%d, %s, s41 offen lds" % ((V0,V1)[i&1], srd))

def emit_swz_out(A, VR, s_lds, ldsoff, dests, vlane16, vt, flags=""):
    e=A.e
    for fbl in range(4):
        e("v_xor_b32 v%d, %d, v%d" % (vt+16+fbl, fbl<<5, VR))
        e("v_add_u32 v%d, s%d, v%d" % (vt+16+fbl, s_lds, vt+16+fbl))
    for fbl in range(4):
        e("ds_read_b64_tr_b16 %s, v%d offset:%d" % (vr(vt+fbl*4,2), vt+16+fbl, ldsoff))
        e("ds_read_b64_tr_b16 %s, v%d offset:%d" % (vr(vt+fbl*4+2,2), vt+16+fbl, ldsoff+512))
    for fbl in range(4):
        e("s_waitcnt lgkmcnt(%d)" % (6-2*fbl))
        e("buffer_store_dwordx4 %s, v%d, s[8:11], s%d offen %s" % (vr(vt+fbl*4,4), vlane16, dests[fbl], flags))

def emit_w1_role(A, wi_sgpr, flags=""):
    e=A.e
    V0,V1,VR=emit_swz_common(A, 9216)
    e("v_lshlrev_b32 v8, 4, v1")
    e("s_mul_hi_u32 s20, s%d, 0x%x" % (wi_sgpr, (2**32+35)//36))
    e("s_mul_i32 s21, s20, 36"); e("s_sub_u32 s21, s%d, s21" % wi_sgpr)
    e("s_lshl_b32 s19, s18, 13")
    e("s_mul_i32 s22, s20, %d" % (32*9216)); e("s_lshl_b32 s23, s21, 8"); e("s_add_u32 s22, s22, s23")
    for task in range(2):
        e("s_add_u32 s24, s22, %d" % (task*128))
        e("s_add_u32 s25, s24, %d" % (16*9216))
        emit_swz_dma(A,V0,V1,"s[12:15]",24,25,9216,19,task*4096)
    e("s_mul_hi_u32 s34, s20, 0x2aaaaaab"); e("s_mul_i32 s35, s34, 6"); e("s_sub_u32 s35, s20, s35")
    e("s_mul_i32 s34, s34, 12"); e("s_add_u32 s34, s34, s35")
    e("s_add_u32 s35, s20, 36")
    for task in range(2):
        for fbl in range(4):
            e("s_lshl_b32 s26, s21, 3"); e("s_add_u32 s26, s26, %d" % (4*task+fbl))
            e("s_mul_hi_u32 s27, s26, 0x55555556")
            e("s_mul_i32 s28, s27, 3"); e("s_sub_u32 s28, s26, s28")
            e("s_mul_hi_u32 s26, s27, 0x55555556")
            e("s_mul_i32 s29, s26, 3"); e("s_sub_u32 s29, s27, s29")
            e("s_mul_i32 s27, s29, 6"); e("s_add_u32 s27, s27, s34")
            e("s_cmp_eq_u32 s29, 2"); e("s_cselect_b32 s27, s35, s27")
            e("s_mul_i32 s27, s27, 3"); e("s_add_u32 s27, s27, s28"); e("s_lshl_b32 s27, s27, 10")
            e("s_mul_i32 s26, s26, 165888"); e("s_add_u32 s27, s27, s26")
            e("s_add_u32 s%d, s27, 0x%x" % (30+fbl, OFF_W1S))
        e("s_waitcnt vmcnt(4)")
        emit_swz_out(A,VR,19,task*4096,[30,31,32,33],8,16,flags)

def w1_dest_index(g, ks, mb):
    jw=g//3; c=g%3
    t = 36+ks if c==2 else (ks//6)*12 + 6*c + ks%6
    return jw*162 + t*3 + mb

def w2_dest_index(j, ks, cb):
    w=cb//9; cbw=cb%9; cc=cbw//3; mb=cbw%3
    kap=ks//6; ksl=ks%6
    return (j*4+w)*162 + ((kap*3+cc)*6+ksl)*3+mb

def emit_w2_role(A, wi_sgpr, flags=""):
    e=A.e
    V0,V1,VR=emit_swz_common(A, 1152)
    e("v_lshlrev_b32 v8, 4, v1")
    e("s_mul_hi_u32 s20, s%d, 0x%x" % (wi_sgpr, (2**32+80)//81))
    e("s_mul_i32 s21, s20, 81"); e("s_sub_u32 s21, s%d, s21" % wi_sgpr)
    e("s_mul_hi_u32 s22, s21, 0x%x" % ((2**32+8)//9))
    e("s_mul_i32 s23, s22, 9"); e("s_sub_u32 s23, s21, s23")
    e("s_lshl_b32 s19, s18, 13")
    for task in range(2):
        for h in range(2):
            e("s_lshl_b32 s26, s22, 6"); e("s_add_u32 s26, s26, %d" % (32*task+16*h))
            e("s_mul_hi_u32 s27, s26, 0x%x" % ((2**32+191)//192))
            e("s_mul_i32 s28, s27, 192"); e("s_sub_u32 s28, s26, s28")
            e("s_mul_hi_u32 s29, s28, 0x%x" % ((2**32+47)//48))
            e("s_mul_i32 s34, s29, 48"); e("s_sub_u32 s28, s28, s34")
            e("s_mul_i32 s29, s29, 144"); e("s_mul_i32 s27, s27, 48")
            e("s_add_u32 s28, s28, s29"); e("s_add_u32 s28, s28, s27")
            e("s_mul_i32 s27, s20, 576"); e("s_add_u32 s28, s28, s27")
            e("s_mul_i32 s28, s28, 1152"); e("s_lshl_b32 s27, s23, 7"); e("s_add_u32 s%d, s28, s27" % (24+h))
        emit_swz_dma(A,V0,V1,"s[12:15]",24,25,1152,19,task*4096)
    for task in range(2):
        e("s_lshl_b32 s26, s22, 1"); e("s_add_u32 s26, s26, %d" % task)
        e("s_mul_hi_u32 s27, s26, 0x2aaaaaab")
        e("s_mul_i32 s28, s27, 6"); e("s_sub_u32 s28, s26, s28")
        e("s_mul_i32 s27, s27, 54"); e("s_mul_i32 s28, s28, 3"); e("s_add_u32 s35, s27, s28")
        for fbl in range(4):
            e("s_lshl_b32 s26, s23, 2"); e("s_add_u32 s26, s26, %d" % fbl)
            e("s_mul_hi_u32 s27, s26, 0x%x" % ((2**32+8)//9))
            e("s_mul_i32 s28, s27, 9"); e("s_sub_u32 s28, s26, s28")
            e("s_mul_hi_u32 s29, s28, 0x55555556")
            e("s_mul_i32 s34, s29, 3"); e("s_sub_u32 s28, s28, s34")
            e("s_mul_i32 s29, s29, 18"); e("s_add_u32 s28, s28, s29"); e("s_add_u32 s28, s28, s35")
            e("s_lshl_b32 s29, s20, 2"); e("s_add_u32 s27, s27, s29"); e("s_mul_i32 s27, s27, 162")
            e("s_add_u32 s27, s27, s28"); e("s_lshl_b32 s27, s27, 10")
            e("s_add_u32 s%d, s27, 0x%x" % (30+fbl, OFF_W2S))
        e("s_waitcnt vmcnt(4)")
        emit_swz_out(A,VR,19,task*4096,[30,31,32,33],8,16,flags)

def emit_w1_role2(A, wg_sgpr, flags=""):
    e=A.e
    e("s_mul_hi_u32 s20, s%d, 0x%x" % (wg_sgpr, (2**32+8)//9))
    e("s_mul_i32 s21, s20, 9"); e("s_sub_u32 s21, s%d, s21" % wg_sgpr)
    e("s_and_b32 s22, s18, 1"); e("s_lshl_b32 s22, s22, 3")
    e("v_xor_b32 v2, s22, v1")
    for i in range(4):
        e("v_xor_b32 v%d, %d, v2" % (3+i, i<<1)); e("v_lshlrev_b32 v%d, 4, v%d" % (3+i,3+i))
    e("s_lshl_b32 s23, s20, 5"); e("s_lshl_b32 s24, s18, 3"); e("s_add_u32 s23, s23, s24"); e("s_mul_i32 s23, s23, 9216")
    e("s_lshl_b32 s24, s21, 10"); e("s_add_u32 s23, s23, s24")
    e("s_lshl_b32 s19, s18, 13")
    for i in range(8):
        e("s_add_u32 m0, s19, %d" % (i*1024))
        if i: e("s_add_u32 s23, s23, 9216")
        else: e("s_nop 0")
        e("buffer_load_dwordx4 v%d, s[12:15], s23 offen lds" % (3+(i&3)))
    e("v_lshrrev_b32 v8, 4, v1")
    e("v_bfe_u32 v9, v1, 2, 2")
    e("v_lshl_add_u32 v10, v8, 3, v9")
    e("v_lshlrev_b32 v10, 10, v10")
    e("v_and_b32 v8, 1, v8"); e("v_lshl_add_u32 v8, v8, 2, v9")
    e("v_lshl_add_u32 v10, v8, 5, v10")
    e("v_and_b32 v8, 3, v1"); e("v_lshl_add_u32 v10, v8, 3, v10")
    e("v_lshlrev_b32 v11, 4, v1")
    e("s_lshl_b32 s24, s18, 8")
    e("v_xor_b32 v10, s24, v10")
    for k in range(8): e("v_xor_b32 v%d, %d, v10" % (12+k, k<<5))
    if G1SEQ:
        e("s_mov_b32 s34, s20"); e("s_add_u32 s35, s20, 36")
    else:
        e("s_mul_hi_u32 s34, s20, 0x2aaaaaab"); e("s_mul_i32 s35, s34, 6"); e("s_sub_u32 s35, s20, s35")
        e("s_mul_i32 s34, s34, 12"); e("s_add_u32 s34, s34, s35"); e("s_add_u32 s35, s20, 36")
    for k in range(8):
        e("s_lshl_b32 s26, s21, 5"); e("s_lshl_b32 s27, s18, 3"); e("s_add_u32 s26, s26, s27"); e("s_add_u32 s26, s26, %d" % k)
        e("s_mul_hi_u32 s27, s26, 0x55555556")
        e("s_mul_i32 s28, s27, 3"); e("s_sub_u32 s28, s26, s28")
        e("s_mul_hi_u32 s26, s27, 0x55555556")
        e("s_mul_i32 s29, s26, 3"); e("s_sub_u32 s29, s27, s29")
        e("s_mul_i32 s27, s29, %d" % (18 if G1SEQ else 6)); e("s_add_u32 s27, s27, s34")
        e("s_cmp_eq_u32 s29, 2"); e("s_cselect_b32 s27, s35, s27")
        e("s_mul_i32 s27, s27, 3"); e("s_add_u32 s27, s27, s28"); e("s_lshl_b32 s27, s27, 10")
        e("s_mul_i32 s26, s26, 165888"); e("s_add_u32 s27, s27, s26")
        e("s_add_u32 s%d, s27, 0x%x" % (46+k, OFF_W1S))
    e("s_waitcnt vmcnt(0)")
    e("s_barrier")
    def rd(k):
        e("ds_read_b64_tr_b16 %s, v%d" % (vr(24+k*4,2), 12+k))
        e("ds_read_b64_tr_b16 %s, v%d offset:4096" % (vr(24+k*4+2,2), 12+k))
    for k in range(7): rd(k)
    for k in range(8):
        e("s_waitcnt lgkmcnt(%d)" % (12 if k==0 else 14-2*k))
        e("buffer_store_dwordx4 %s, v11, s[8:11], s%d offen %s" % (vr(24+k*4,4), 46+k, flags))
        if k==0: rd(7)

def emit_w2_role2(A, wg_sgpr, flags=""):
    e=A.e
    e("s_mul_hi_u32 s20, s%d, 0x%x" % (wg_sgpr, (2**32+17)//18))
    e("s_mul_i32 s21, s20, 18"); e("s_sub_u32 s21, s%d, s21" % wg_sgpr)
    for h in range(2):
        e("s_lshl_b32 s26, s21, 5"); e("s_add_u32 s26, s26, %d" % (16*h))
        e("s_mul_hi_u32 s27, s26, 0x%x" % ((2**32+191)//192))
        e("s_mul_i32 s28, s27, 192"); e("s_sub_u32 s28, s26, s28")
        e("s_mul_hi_u32 s29, s28, 0x%x" % ((2**32+47)//48))
        e("s_mul_i32 s34, s29, 48"); e("s_sub_u32 s28, s28, s34")
        e("s_mul_i32 s29, s29, 144"); e("s_mul_i32 s27, s27, 48")
        e("s_add_u32 s28, s28, s29"); e("s_add_u32 s28, s28, s27")
        e("s_mul_i32 s27, s20, 576"); e("s_add_u32 s28, s28, s27")
        e("s_mul_i32 s%d, s28, 1152" % (24+h))
    e("v_lshlrev_b32 v11, 4, v1")
    e("s_mul_i32 s22, s18, 9")
    e("s_cmp_ge_u32 s18, 2")
    e("s_cselect_b32 s23, s25, s24"); e("s_cselect_b32 s26, 18, 0")
    e("s_sub_u32 s26, s22, s26"); e("s_lshl_b32 s26, s26, 10"); e("s_add_u32 s23, s23, s26")
    e("s_lshl_b32 s19, s22, 10")
    for i in range(9):
        e("s_add_u32 m0, s19, %d" % (i*1024))
        if i: e("s_add_u32 s23, s23, 1024")
        else: e("s_nop 0")
        e("buffer_load_dwordx4 v11, s[12:15], s23 offen lds")
    e("v_lshrrev_b32 v8, 4, v1"); e("v_bfe_u32 v9, v1, 2, 2"); e("v_lshl_add_u32 v10, v8, 3, v9")
    e("s_movk_i32 s26, 1152"); e("v_mul_lo_u32 v10, v10, s26")
    e("v_and_b32 v8, 3, v1"); e("v_lshl_add_u32 v10, v8, 3, v10")
    e("s_mul_i32 s26, s18, %d" % (9*32)); e("v_add_u32 v10, s26, v10")
    e("s_mul_hi_u32 s27, s21, 0x2aaaaaab"); e("s_mul_i32 s28, s27, 6"); e("s_sub_u32 s28, s21, s28")
    e("s_mul_i32 s27, s27, 54"); e("s_mul_i32 s28, s28, 3"); e("s_add_u32 s27, s27, s28")
    e("s_lshl_b32 s28, s20, 2"); e("s_add_u32 s28, s28, s18"); e("s_mul_i32 s28, s28, 162"); e("s_add_u32 s27, s27, s28")
    e("s_lshl_b32 s27, s27, 10"); e("s_add_u32 s27, s27, 0x%x" % OFF_W2S)
    e("s_waitcnt vmcnt(0)")
    e("s_barrier")
    for k in range(9):
        if k==7: e("s_waitcnt lgkmcnt(8)")
        e("ds_read_b64_tr_b16 %s, v10 offset:%d" % (vr(24+k*4,2), k*32))
        e("ds_read_b64_tr_b16 %s, v10 offset:%d" % (vr(24+k*4+2,2), k*32+4*1152))
    for k in range(9):
        e("s_waitcnt lgkmcnt(%d)" % min(15,16-2*k) if k>0 else "s_waitcnt lgkmcnt(14)")
        e("s_add_u32 s28, s27, %d" % (((k//3)*18+(k%3))*1024))
        e("buffer_store_dwordx4 %s, v11, s[8:11], s28 offen %s" % (vr(24+k*4,4), flags))

def emit_wt_role2(A, wg_sgpr, flags=""):
    e=A.e
    e("s_lshr_b32 s20, s%d, 1" % wg_sgpr)
    e("s_and_b32 s21, s%d, 1" % wg_sgpr)
    e("s_cmp_eq_u32 s21, 1")
    e("s_cselect_b32 s12, s24, s12"); e("s_cselect_b32 s13, s25, s13")
    e("v_lshlrev_b32 v11, 4, v1")
    e("s_mul_i32 s23, s20, 36992"); e("s_lshl_b32 s22, s18, 10"); e("s_add_u32 s23, s23, s22")
    for i in range(10):
        if i==9:
            e("s_cmp_lg_u32 s18, 0"); e("s_cbranch_scc1 WT2_skip")
        e("s_add_u32 m0, s22, %d" % (i*4096))
        if i: e("s_add_u32 s23, s23, 4096")
        else: e("s_nop 0")
        e("buffer_load_dwordx4 v11, s[12:15], s23 offen lds")
    A.label("WT2_skip")
    e("v_and_b32 v2, 15, v1"); e("v_lshrrev_b32 v3, 4, v1")
    e("s_movk_i32 s26, 578"); e("v_mul_lo_u32 v4, v2, s26")
    e("s_mul_i32 s26, s18, 72"); e("v_add_u32 v5, s26, v3")
    e("v_lshl_add_u32 v6, v5, 1, v4")
    e("v_cmp_eq_u32 vcc, 0, v5"); e("v_add_u32 v7, 576, v4"); e("s_nop 0")
    e("v_cndmask_b32 v7, v6, v7, vcc")
    e("v_lshlrev_b32 v8, 13, v5"); e("v_lshl_add_u32 v8, v2, 3, v8")
    e("s_lshr_b32 s26, s20, 3"); e("s_lshl_b32 s26, s26, 11"); e("s_lshl_b32 s27, s21, 10"); e("s_add_u32 s26, s26, s27")
    e("s_and_b32 s27, s20, 1"); e("s_lshl_b32 s27, s27, 9"); e("s_add_u32 s26, s26, s27")
    e("s_bfe_u32 s27, s20, 0x20001"); e("s_lshl_b32 s27, s27, 7"); e("s_add_u32 s26, s26, s27")
    e("s_add_u32 s26, s26, 0x%x" % OFF_WT)
    e("s_waitcnt vmcnt(0)")
    e("s_barrier")
    def rd(it):
        for nb in range(2):
            for rr in range(2):
                e("ds_read_u16 v%d, v%d offset:%d" % (16+(it%3)*4+nb*2+rr, 7 if it==0 else 6, it*8+(16*nb+32*rr)*578))
    rd(0); rd(1)
    for it in range(18):
        if it+2<18: rd(it+2)
        e("s_waitcnt lgkmcnt(%d)" % (4*min(2,17-it)))
        b=16+(it%3)*4; o=32+(it&1)*2
        e("v_lshl_or_b32 v%d, v%d, 16, v%d" % (o, b+1, b))
        e("v_lshl_or_b32 v%d, v%d, 16, v%d" % (o+1, b+3, b+2))
        e("buffer_store_dwordx2 %s, v8, s[8:11], s26 offen %s" % (vr(o,2), flags))
        e("s_add_u32 s26, s26, %d" % (4*8192))
```

```python
import sys
sys.path.insert(0,"gen")
from k1 import gen_k1
from k2 import gen_k2
from k3 import gen_k3
from k4b import gen_k4
from k4 import gen_k5
HEADER=open("sequential_preLN__spectral_gfnet__dense_activation_gelu__prompt.s.ref").read().split("; Override")[0]
def build(path, k4opts=None, which=("k1","k2","k3","k4","k5"), k1opts=None,k2opts=None,k3opts=None,stamps=False, istamps=False, align=None):
    parts=[]
    if "k1" in which: parts.append(("k1_kernel",)+gen_k1(**(k1opts or {})))
    if "k2" in which: parts.append(("k2_kernel",)+gen_k2(**(k2opts or {})))
    if "k3" in which: parts.append(("k3_kernel",)+gen_k3(**(k3opts or {})))
    if "k4" in which: parts.append(("k4_kernel",)+gen_k4(**(k4opts or {})))
    if "k5" in which and not (k4opts or {}).get("fuse", True):
        t,kd,l=gen_k5(); parts.append(("k5_kernel",t,kd,l,576))
    from stamp import apply_stamps
    import re as _re
    np2=[]; allnames={}
    for kid,(n,t,kd,l,g) in enumerate(parts):
        t,names=apply_stamps(n,t,kid,istamps and n in ("k1_kernel","k2_kernel","k3_kernel"))
        if istamps and n in ("k1_kernel","k2_kernel","k3_kernel"):
            kd=_re.sub(r"next_free_sgpr \d+","next_free_sgpr 100",kd); print(n,names)
        np2.append((n,t,kd,l,g))
    parts=np2
    if stamps:
        np_=[]
        for kid,(n,t,kd,l,g) in enumerate(parts):
            lines=t.split("\n")
            out=[]
            started=False
            for ln in lines:
                if ln.strip()=="s_endpgm":
                    out.append("  s_branch %s_fin" % n) if not (out and out[-1].strip()==n+"_end:") else out.append(ln)
                    continue
                out.append(ln)
                if (not started) and ln.strip().startswith("s_cbranch_scc1 %s_end" % n):
                    out.append("  s_memrealtime s[90:91]"); started=True
            txt="\n".join(out)
            txt=txt.replace("%s_end:\n" % n, "  s_branch %s_fin\n%s_end:\n" % (n,n))
            txt+="""%s_fin:
  s_waitcnt vmcnt(0)
  s_memrealtime s[92:93]
  s_waitcnt lgkmcnt(0)
  v_lshrrev_b32 v2, 6, v0
  v_and_b32 v3, 63, v0
  s_lshl_b32 s94, s2, 2
  v_add_u32 v2, s94, v2
  v_lshlrev_b32 v2, 3, v2
  v_mov_b32 v4, s90
  v_mov_b32 v5, s92
  s_mov_b32 s94, 0x%x
  v_cmp_eq_u32 vcc, 0, v3
  s_and_saveexec_b64 s[96:97], vcc
  buffer_store_dwordx2 v[4:5], v2, s[8:11], s94 offen
  s_endpgm
""" % (n, 0x5000000+kid*0x10000)
            import re
            kd=re.sub(r"next_free_sgpr \d+","next_free_sgpr 100",kd)
            np_.append((n,txt,kd,l,g))
        parts=np_
    hdr=HEADER+"".join("; @launch kernel=%s grid=(%d,1,1) block=(256,1,1) lds=%d\n" % (n,g,l) for n,t,kd,l,g in parts)
    s=hdr+'.amdgcn_target "amdgcn-amd-amdhsa--gfx950"\n.text\n'+"".join(p[1] for p in parts)+'text_end:\n  s_endpgm\n'+'.section .rodata,"a"\n'+"".join(p[2] for p in parts)
    if align:
        from align import align_text
        for kn in align:
            if any(p[0]==kn for p in parts): s=align_text(s,kn,verbose=True)
    open(path,"w").write(s)
if __name__=="__main__":
    opts=eval("dict(%s)" % (sys.argv[2] if len(sys.argv)>2 else ""))
    build(sys.argv[1], **opts)
```
